```python
import torch

def _softmax(x, axis=-1):
    return torch.softmax(x, dim=axis)
def _gelu(x):
    return torch.nn.functional.gelu(x, approximate="tanh")
def _silu(x):
    return torch.nn.functional.silu(x)
def _sigmoid(x):
    return torch.sigmoid(x)
def _layernorm(x, axis=-1, eps=1e-5):
    m = x.mean(dim=axis, keepdim=True)
    v = x.var(dim=axis, keepdim=True, unbiased=False)
    return (x - m) / torch.sqrt(v + eps)
def _scatter_add(tgt, idx, src, axis=0):
    return tgt.clone().index_add_(axis, idx, src)
def _segment_sum(src, seg, n):
    out = torch.zeros((n,) + src.shape[1:], dtype=src.dtype)
    return out.index_add_(0, seg, src)
def _pad(x, pw):
    flat = tuple(v for pair in reversed(pw) for v in pair)
    return torch.nn.functional.pad(x, flat)

kernel_name = 'standalone__gqa_softmax__near_ridge'

def setup_inputs():

    _w = (lambda a: (lambda t: t.to(torch.bfloat16) if t.is_floating_point() else t)(torch.as_tensor(a)))
    B, Hq, Hkv, Sq, Sk, D = 8, 32, 32, 512, 1024, 128
    return {
        "q": _w((lambda *s: torch.randn(*s, dtype=torch.bfloat16) * 0.8)(B, Hq, Sq, D)),
        "k": _w((lambda *s: torch.randn(*s, dtype=torch.bfloat16) * 0.8)(B, Hkv, Sk, D)),
        "v": _w((lambda *s: torch.randn(*s, dtype=torch.bfloat16) * 0.05)(B, Hkv, Sk, D)),
    }

def reference(q, k, v):
    B, Hq, Sq, D = q.shape
    Hkv = k.shape[1]
    rep = Hq // Hkv
    k = (lambda x, n, axis: torch.repeat_interleave(x, n, dim=axis))(k, rep, axis=1)
    v = (lambda x, n, axis: torch.repeat_interleave(x, n, dim=axis))(v, rep, axis=1)
    scale = D ** -0.5
    scores = torch.einsum("bhqd,bhkd->bhqk", q, k) * scale
    p = _softmax(scores, axis=-1)
    return torch.einsum("bhqk,bhkd->bhqd", p, v)
```

```python
import re

TRANS = ("v_exp_f32", "v_log_f32", "v_rcp_f32", "v_rsq_f32", "v_sqrt_f32", "v_sin_f32", "v_cos_f32")

def parse_regs(op):
    op = op.strip()
    op = op.lstrip('-')
    op = op.strip('|')
    m = re.fullmatch(r'([vas])(\d+)', op)
    if m: return [(m.group(1), int(m.group(2)))]
    m = re.fullmatch(r'([vas])\[(\d+):(\d+)\]', op)
    if m: return [(m.group(1), i) for i in range(int(m.group(2)), int(m.group(3)) + 1)]
    if op == 'vcc': return [('s', 'vcc_lo'), ('s', 'vcc_hi')]
    if op in ('vcc_lo', 'vcc_hi', 'm0', 'exec_lo', 'exec_hi'): return [('s', op)]
    if op == 'exec': return [('s', 'exec_lo'), ('s', 'exec_hi')]
    return []

class Inst:
    __slots__ = ("text", "op", "kind", "rd", "wr", "meta", "srcC", "srcAB", "states", "sdata")
    def __init__(self, text, meta=None):
        self.text = text
        self.meta = meta
        self.srcC = set(); self.srcAB = set(); self.sdata = set()
        t = text.split(';')[0].strip()
        if t.endswith(':') or t.startswith('.') or t == '':
            self.op = 'label'; self.kind = 'label'; self.rd = set(); self.wr = set(); self.states = 0
            return
        parts = t.split(None, 1)
        op = parts[0]; self.op = op
        rest = parts[1] if len(parts) > 1 else ''
        ops = [x.strip() for x in rest.split(',')] if rest else []
        mods = ''
        if ops:
            l = ops[-1].split(None, 1)
            ops[-1] = l[0]
            mods = l[1] if len(l) > 1 else ''
        R = [parse_regs(o) for o in ops]
        rd = set(); wr = set(); self.states = 1
        if op.startswith('v_mfma'):
            self.kind = 'mfma'
            wr |= set(R[0]); rd |= set(R[1]) | set(R[2]) | set(R[3])
            self.srcC = set(R[3]); self.srcAB = set(R[1]) | set(R[2])
        elif op.startswith('v_'):
            self.kind = 'trans' if op.replace('_e32', '').replace('_e64', '') in TRANS else 'valu'
            if op.startswith('v_permlane') and 'swap' in op:
                wr |= set(R[0]) | set(R[1]); rd |= set(R[0]) | set(R[1]); self.kind = 'perm'
            elif op.startswith('v_nop'):
                pass
            else:
                wr |= set(R[0])
                for r in R[1:]: rd |= set(r)
                if op.startswith('v_fmac') or op.startswith('v_mac'): rd |= set(R[0])
                if op.startswith('v_cndmask') and len(ops) == 3: rd |= set(parse_regs('vcc'))
                if op.startswith('v_readfirstlane') or op.startswith('v_readlane'): self.kind = 'rfl'
                if 'dpp' in op or 'row_' in mods or 'quad_perm' in mods: self.kind = 'dpp'
        elif op.startswith('ds_read'):
            self.kind = 'dsr'; wr |= set(R[0]); rd |= set(R[1])
        elif op.startswith('ds_write'):
            self.kind = 'dsw'
            for r in R: rd |= set(r)
        elif op.startswith('buffer_load') or op.startswith('global_load'):
            if re.search(r'\blds\b', mods):
                self.kind = 'dma'
                for r in R: rd |= set(r)
                rd.add(('s', 'm0'))
            else:
                self.kind = 'vld'; wr |= set(R[0])
                for r in R[1:]: rd |= set(r)
        elif op.startswith('buffer_store') or op.startswith('global_store'):
            self.kind = 'vst'
            for r in R: rd |= set(r)
            if 'x4' in op or 'x3' in op:
                self.sdata = set(R[0]) if op.startswith('buffer') else set(R[1])
        elif op.startswith('s_load') or op.startswith('s_memtime') or op.startswith('s_buffer_load') or op.startswith('s_memrealtime'):
            self.kind = 'smem'; wr |= set(R[0])
            for r in R[1:]: rd |= set(r)
        elif op == 's_nop':
            self.kind = 'nop'; self.states = int(ops[0], 0) + 1
        elif op == 's_waitcnt':
            self.kind = 'wait'
        elif op == 's_barrier':
            self.kind = 'barrier'
        elif op.startswith('s_cbranch') or op == 's_branch' or op == 's_endpgm' or op == 's_setprio' or op == 's_sleep':
            self.kind = 'ctl'
            if 'vcc' in op: rd |= set(parse_regs('vcc'))
        elif op.startswith('s_cmp') or op.startswith('s_bitcmp'):
            self.kind = 'salu'
            for r in R: rd |= set(r)
        elif op.startswith('s_setpc'):
            self.kind = 'ctl'; rd |= set(R[0])
        elif op.startswith('s_'):
            self.kind = 'salu'; wr |= set(R[0])
            for r in R[1:]: rd |= set(r)
            if 'saveexec' in op: wr |= set(parse_regs('exec'))
        else:
            raise ValueError("unknown op: " + text)
        self.rd = rd; self.wr = wr

class Env:
    __slots__ = ("fn",)
    kind = 'env'; text = None
    def __init__(self, fn): self.fn = fn

VALUK = ('valu', 'trans', 'perm', 'rfl', 'dpp')
VMEMK = ('dma', 'vld', 'vst')

def required_gap(p, c):
    need = 0
    pk, ck = p.kind, c.kind
    if pk == 'mfma':
        P8 = '32x32x16' in p.op
        big = 12 if P8 else 8
        ov = 10 if P8 else 6
        war = 7 if P8 else 3
        D = p.wr
        if ck == 'mfma':
            if D & c.srcAB: need = max(need, big)
            if D & c.srcC:
                if not (c.srcC == D and c.op == p.op): need = max(need, ov)
            if (D & c.wr) and not (c.srcC == D and c.op == p.op): need = max(need, ov)
        elif ck in VALUK:
            if D & (c.rd | c.wr): need = max(need, big)
            if p.srcC & c.wr: need = max(need, war)
        elif ck in ('dsr', 'dsw', 'dma', 'vld', 'vst'):
            if D & (c.rd | c.wr): need = max(need, big)
            if p.srcC & c.wr: need = max(need, war)
    elif pk in VALUK:
        vw = {r for r in p.wr if r[0] in 'va'}
        sw = {r for r in p.wr if r[0] == 's'}
        if ck == 'mfma' and vw & c.rd: need = max(need, 2)
        if pk == 'trans' and ck in VALUK and ck != 'trans' and vw & c.rd: need = max(need, 1)
        if pk == 'trans' and ck in ('dsw', 'vst', 'dsr', 'vld', 'dma') and vw & c.rd: need = max(need, 1)
        if ck in ('perm', 'dpp') and vw & c.rd: need = max(need, 2)
        if ck == 'rfl' and vw & c.rd: need = max(need, 1)
        if sw:
            if ck in VALUK and sw & c.rd: need = max(need, 4 if ck == 'rfl' else 2)
            if ck in VMEMK and sw & c.rd: need = max(need, 5)
            if ck in ('salu', 'ctl', 'smem') and sw & c.rd: need = max(need, 5 if ck == 'ctl' else 1)
            if {('s', 'exec_lo'), ('s', 'exec_hi')} & sw and ck in ('mfma', 'dpp', 'perm', 'rfl'): need = max(need, 5)
    elif pk == 'salu':
        if ('s', 'm0') in p.wr and ck == 'dma': need = max(need, 1)
    elif pk == 'vst':
        if p.sdata and (p.sdata & c.wr): need = max(need, 2)
    return need

def parse_wait(text):
    vm = re.search(r'vmcnt\((\d+)\)', text); lg = re.search(r'lgkmcnt\((\d+)\)', text)
    return (int(vm.group(1)) if vm else None, int(lg.group(1)) if lg else None)

class CheckError(Exception): pass

def check_trace(trace, env, verbose=False):
    errs = []
    hist = []
    pos = 0
    vmq = []
    lgq = []
    dma_state = {}
    reads_pending = {}
    for idx, ins in enumerate(trace):
        if ins.kind == 'env':
            ins.fn(env); continue
        if ins.kind == 'label': continue
        for (p, ppos) in hist:
            need = required_gap(p, ins)
            have = pos - ppos - 1 + 0
            if need > have:
                errs.append("HAZARD need %d have %d: [%s] -> [%s]" % (need, have, p.text, ins.text))
        for q, nm in ((vmq, 'vm'), (lgq, 'lgkm')):
            for (p, tag) in q:
                if p.wr & (ins.rd | ins.wr) and ins.kind != 'wait':
                    errs.append("%s not waited: [%s] -> [%s]" % (nm, p.text, ins.text))
        meta = ins.meta(env) if callable(ins.meta) else ins.meta
        if ins.kind in VMEMK:
            vmq.append((ins, meta))
            if len(vmq) > 63: errs.append("vmcnt overflow at " + ins.text)
            if ins.kind == 'dma' and meta is not None:
                region, tag, shared = meta
                st = reads_pending.get(region)
                if st is not None and st != ('barriered' if shared else 'done') and not (not shared and st == 'barriered'):
                    errs.append("LDS WAR: dma %s into %s while reads %s" % (tag, region, st))
                d = dma_state.setdefault(region, {})
                if d.get('tag') != tag:
                    d.clear(); d['tag'] = tag
                d['inflight'] = d.get('inflight', 0) + 1
                d['visible'] = False
                d['shared'] = shared
        elif ins.kind in ('dsr', 'dsw', 'smem'):
            lgq.append((ins, meta))
            if len(lgq) > 15 and False: errs.append("lgkm overflow at " + ins.text)
            if ins.kind == 'dsr' and meta is not None:
                region, tag = meta
                d = dma_state.get(region)
                if d is None or d['tag'] != tag:
                    errs.append("LDS RAW: read of %s expects %s but holds %s" % (region, tag, d and d['tag']))
                elif d['inflight'] > 0 or (d['shared'] and not d['visible']):
                    errs.append("LDS RAW: read of %s/%s not landed/visible [%s]" % (region, tag, ins.text))
                reads_pending[region] = 'inflight'
        elif ins.kind == 'wait':
            vm, lg = parse_wait(ins.text)
            if vm is not None:
                while len(vmq) > vm:
                    p, tag = vmq.pop(0)
                    if p.kind == 'dma' and tag is not None:
                        d = dma_state[tag[0]]
                        if d['tag'] == tag[1]: d['inflight'] -= 1
            if lg is not None:
                if any(p.kind == 'smem' for p, _ in lgq) and lg != 0:
                    errs.append("counted lgkmcnt with smem outstanding: " + ins.text)
                while len(lgq) > lg:
                    lgq.pop(0)
                for region in list(reads_pending):
                    if reads_pending[region] == 'inflight' and not any(t is not None and p.kind == 'dsr' and t[0] == region for p, t in lgq):
                        reads_pending[region] = 'done'
        elif ins.kind == 'barrier':
            for region, d in dma_state.items():
                if d.get('inflight', 0) == 0: d['visible'] = True
            for region in reads_pending:
                if reads_pending[region] == 'done': reads_pending[region] = 'barriered'
        hist.append((ins, pos + ins.states - 1))
        pos += ins.states
        while hist and pos - hist[0][1] > 24: hist.pop(0)
    return errs
```

```python
import sys, struct, math
from asmlib import Inst, Env, check_trace

NAME = "standalone__gqa_softmax__near_ridge_kernel"
def f2u(x): return struct.unpack('<I', struct.pack('<f', x))[0]

class Opt:
    stamps = False
    nt_kv = False
    store_mod = ""
    first_b1_vm = True
O = Opt()

S_Q, S_K, S_V, S_O = 12, 16, 20, 24
sC = 28
sT = 29
sW4 = 30
sIt = 31
sMode = 32
sQO = 33
sFail = 34
sTmp = 36
sWave = 44
sQ1 = 45
sQS = 46
sQO2 = 47
sStamp = 48
S_WS = 52

vKA = 8
vVA = 16
vKD = 20
vVD = 24
vQO = 25
vMC = 26
vL = 28
vSM = 30
vT = 34
vE = 48
vP = 80
vS = 96
vO = 128
aQ, aKF, aVF, aQ2 = 0, 64, 128, 192
LDS_K, LDS_V, LDS_Q = 0, 65536, 131072

def vr(b, n=1): return "v%d" % b if n == 1 else "v[%d:%d]" % (b, b + n - 1)
def ar(b, n=1): return "a%d" % b if n == 1 else "a[%d:%d]" % (b, b + n - 1)
def sr(b, n=1): return "s%d" % b if n == 1 else "s[%d:%d]" % (b, b + n - 1)
I = Inst

def mfma_qk(q, ks, buf):
    S = vr(vS + 16 * q, 16)
    return I("v_mfma_f32_32x32x16_bf16 %s, %s, %s, %s" % (S, ar(aKF + 32 * buf + 4 * ks, 4), ar(aQ + 32 * q + 4 * ks, 4), "0" if ks == 0 else S))
def mfma_pv(q, s, db, buf, czero=False):
    D = vr(vO + 64 * q + 16 * db, 16)
    return I("v_mfma_f32_32x32x16_bf16 %s, %s, %s, %s" % (D, ar(aVF + 32 * buf + 16 * s + 4 * db, 4), vr(vP + 8 * q + 4 * s, 4), "0" if (czero and s == 0) else D))

def sm_step(q, k):
    L = []
    S = vS + 16 * q
    if 0 <= k <= 15: L.append(I("v_exp_f32 %s, %s" % (vr(S + k), vr(S + k))))
    if k + 1 <= 15: L.append(I("v_fma_f32 %s, %s, %s, -%s" % (vr(S + k + 1), vr(S + k + 1), sr(sC), vr(vMC + q))))
    if k - 1 >= 0:
        L.append(I("v_add_f32 %s, %s, %s" % (vr(vL + q), vr(vL + q), vr(S + k - 1))))
        if (k - 1) & 1:
            L.append(I("v_cvt_pk_bf16_f32 %s, %s, %s" % (vr(vP + 8 * q + (k - 1) // 2), vr(S + k - 2), vr(S + k - 1))))
    return L

def k_read(ks, buf, slot, kb, dt):
    return I("ds_read_b128 %s, %s offset:%d" % (ar(aKF + 32 * buf + 4 * ks, 4), vr(vKA + ks), slot * 16384 + kb * 8192),
             meta=lambda e: (('K', slot), e['tile'] + dt))
def v_read(s, db, u, buf, slot, kb, dt):
    return I("ds_read_b64_tr_b16 %s, %s offset:%d" % (ar(aVF + 32 * buf + 16 * s + 4 * db + 2 * u, 2), vr(vVA + db), slot * 16384 + (32 * kb + 16 * s + 8 * u) * 256),
             meta=lambda e: (('V', slot), e['tile'] + dt))
def dma(which, j, slot, dt, soff=None):
    srd = S_K if which == 'K' else S_V
    vo = vKD + j if which == 'K' else vVD
    return I("buffer_load_dwordx4 %s, %s, %s offen offset:%d %slds" % (vr(vo), sr(srd, 4), sr(sT) if soff is None else soff, j * 1024, "nt " if O.nt_kv else ""),
             meta=lambda e: ((which, slot), e['tile'] + dt, True))
def set_m0(which, slot):
    base = (LDS_K if which == 'K' else LDS_V) + slot * 16384
    return I("s_add_u32 m0, %s, %d" % (sr(sW4), base))

def stamp(idx):
    if not O.stamps: return []
    return [I("s_memtime %s" % sr(sStamp, 2)), I("s_waitcnt lgkmcnt(0)"),
            I("v_mov_b32 %s, %s" % (vr(vT + 13), sr(sStamp))),
            I("buffer_store_dword %s, %s, %s, 0 offen offset:%d" % (vr(vT + 13), vr(7), sr(S_WS, 4), idx * 4))]

def weave(anchors, gaps):
    out = []
    for g, a in enumerate(anchors):
        out.append(a)
        out += gaps[g]
    return out

def max_calc(q):
    S = vS + 16 * q
    t = vT + 4 * q
    L = []
    L.append(I("v_max3_f32 %s, %s, %s, %s" % (vr(t), vr(S), vr(S + 1), vr(S + 2))))
    L.append(I("v_max3_f32 %s, %s, %s, %s" % (vr(t + 1), vr(S + 3), vr(S + 4), vr(S + 5))))
    for i in range(3, 8):
        d = t + (i & 1)
        L.append(I("v_max3_f32 %s, %s, %s, %s" % (vr(d), vr(d), vr(S + 2 * i), vr(S + 2 * i + 1))))
    L.append(I("v_max_f32 %s, %s, %s" % (vr(t), vr(t), vr(t + 1))))
    L.append(I("v_mov_b32 %s, %s" % (vr(t + 1), vr(t))))
    L.append(I("v_mov_b32 %s, 0" % vr(vL + q)))
    L.append(I("s_nop 0"))
    L.append(I("v_permlane32_swap_b32 %s, %s" % (vr(t), vr(t + 1))))
    L.append(I("v_max_f32 %s, %s, %s" % (vr(t), vr(t), vr(t + 1))))
    L.append(I("v_cndmask_b32 %s, %s, %s, vcc" % (vr(t), vr(t), vr(vSM + q))))
    L.append(I("v_mul_f32 %s, %s, %s" % (vr(vMC + q), sr(sC), vr(t))))
    return L

def period(par, slot, first=False, czero_q1=False, extra=None, endx=None):
    buf = par; ob = 1 - par
    rslot, rkb, rdt = (slot, 1, 0) if par == 0 else ((slot + 1) & 3, 0, 1)
    kreads = [k_read(ks, ob, rslot, rkb, rdt) for ks in range(8)]
    vreads = [v_read(f >> 2, f & 3, u, ob, rslot, rkb, rdt) for f in range(8) for u in range(2)]
    if par == 0:
        dm = [set_m0('V', (slot + 3) & 3)] + [dma('V', j, (slot + 3) & 3, 3) for j in range(4)] + [I("s_add_u32 %s, %s, 16384" % (sr(sT), sr(sT)))]
    else:
        dm = [set_m0('K', slot)] + [dma('K', j, slot, 4) for j in range(4)]
    if not first:
        anchors = [mfma_qk(0, ks, buf) for ks in range(8)] + [mfma_pv(1, f >> 2, f & 3, ob, czero_q1) for f in range(8)] \
            + [mfma_qk(1, ks, buf) for ks in range(8)] + [mfma_pv(0, f >> 2, f & 3, buf) for f in range(8)]
        gaps = [[] for _ in range(32)]
        for k in range(6, 17): gaps[k - 6] += sm_step(1, k)
        for k in range(-1, 17): gaps[10 + k] += sm_step(0, k)
        for k in range(-1, 6): gaps[26 + k] += sm_step(1, k)
        for i in range(8): gaps[i].append(kreads[i])
        for i in range(16): gaps[8 + i].append(vreads[i])
        gaps[23].append(dm[0])
        for j in range(4): gaps[24 + j].append(dm[1 + j])
        for x in dm[5:]: gaps[28].append(x)
    else:
        assert par == 0
        anchors = [mfma_qk(0, ks, buf) for ks in range(8)] + [mfma_qk(1, ks, buf) for ks in range(8)] \
            + [mfma_pv(0, f >> 2, f & 3, buf, True) for f in range(8)]
        gaps = [[] for _ in range(24)]
        for i in range(8):
            gaps[i].append(kreads[i])
            gaps[i] += vreads[2 * i:2 * i + 2]
        gaps[0] += [I("s_cmp_lg_u32 %s, 0" % sr(sMode)), I("s_cselect_b64 vcc, -1, 0")]
        gaps[7] += [dm[0]]
        gaps[8] += dm[1:3]
        gaps[9] += dm[3:]
        gaps[9] += [I("s_nop 3")]
        mc = max_calc(0)
        gaps[10] += mc[:6]; gaps[11] += mc[6:12]; gaps[12] += mc[12:]
        st = [sm_step(0, k) for k in range(-1, 17)]
        gaps[12] += st[0]
        for i, g in zip(range(1, 10), [13, 13, 14, 14, 15, 15, 15, 15, 15]): gaps[g] += st[i]
        gaps[15].append(I("s_nop 1"))
        for i, g in zip(range(10, 18), [16, 16, 17, 17, 18, 18, 19, 19]): gaps[g] += st[i]
        gaps[19].append(I("s_nop 1"))
        mc = max_calc(1)
        gaps[20] += mc[:8]; gaps[21] += mc[8:]
        for k, g in zip(range(-1, 6), [21, 22, 22, 23, 23, 23, 23]): gaps[g] += sm_step(1, k)
    last = len(anchors) - 1
    if extra:
        for g, x in extra: gaps[g] += x
    if par == 0:
        if first and O.first_b1_vm:
            gaps[last] += [I("s_cmp_lg_u32 %s, 0" % sr(sIt)), I("s_cbranch_scc1 FIRST_W1"), Cond('it0', [I("s_waitcnt vmcnt(16)")]), I("FIRST_W1:"),
                           I("s_waitcnt vmcnt(32) lgkmcnt(0)"), I("s_barrier")]
        else:
            gaps[last] += [I("s_waitcnt vmcnt(16) lgkmcnt(0)"), I("s_barrier")]
    else:
        gaps[last] += [I("s_waitcnt lgkmcnt(0)")]
    if endx: gaps[last] += endx
    return weave(anchors, gaps)

class Cond:
    kind = 'cond'; text = None
    def __init__(self, flag, body): self.flag = flag; self.body = body

def tile_code(slot, first=False, endx=None, extraB=None):
    L = period(0, slot, first=first)
    L += period(1, slot, czero_q1=first, endx=endx, extra=extraB)
    L.append(Env(lambda e: e.__setitem__('tile', e['tile'] + 1)))
    return L

def epilogue(q):
    L = []
    t = vT + 4 * q
    L.append(I("v_mov_b32 %s, %s" % (vr(t), vr(vL + q))))
    L.append(I("s_nop 1"))
    L.append(I("v_permlane32_swap_b32 %s, %s" % (vr(t), vr(vL + q))))
    L.append(I("v_add_f32 %s, %s, %s" % (vr(t), vr(t), vr(vL + q))))
    L.append(I("v_rcp_f32 %s, %s" % (vr(t + 1), vr(t))))
    L.append(I("v_cmp_nlt_f32 vcc, %s, %s" % (vr(t), vr(vT + 12))))
    pre = L
    body = []
    for ks in range(8):
        o = vO + 64 * q + 8 * ks
        e = vE + 4 * ks
        for i in range(8):
            body.append(I("v_mul_f32 %s, %s, %s" % (vr(o + i), vr(o + i), vr(t + 1))))
        for i in range(4):
            body.append(I("v_cvt_pk_bf16_f32 %s, %s, %s" % (vr(e + i), vr(o + 2 * i), vr(o + 2 * i + 1))))
        body.append(I("buffer_store_dwordx4 %s, %s, %s, %s offen offset:%d%s" % (vr(e, 4), vr(vQO), sr(S_O, 4), sr(sQO if q == 0 else sQO2), 32 * ks, O.store_mod)))
        if ks == 0:
            body.append(I("s_or_b64 %s, %s, vcc" % (sr(sFail, 2), sr(sFail, 2))))
    return pre, body

def stage_read(dst, tag):
    L = []
    for ks in range(8):
        L.append(I("v_add_u32 %s, %s, %s" % (vr(vE + ks), sr(sQS), vr(vKA + ks))))
    for ks in range(8):
        L.append(I("ds_read_b128 %s, %s" % (ar(dst + 4 * ks, 4), vr(vE + ks)), meta=(lambda e: (('Q', 0), tag) if e['blk'] == 0 else None)))
    return L
def stage_dma(tag):
    L = []
    for hf in range(2):
        L.append(I("s_add_u32 m0, %s, %d" % (sr(sQS), hf * 4096)))
        if hf: L.append(I("s_add_u32 %s, %s, 4096" % (sr(sQ1), sr(sQ1))))
        else: L.append(I("s_nop 0"))
        for j in range(4):
            L.append(I("buffer_load_dwordx4 %s, %s, %s offen offset:%d lds" % (vr(vKD + j), sr(S_Q, 4), sr(sQ1), j * 1024), meta=(('Q', 0), tag, False)))
    L.append(I("s_add_u32 %s, %s, 4096" % (sr(sQ1), sr(sQ1))))
    return L

def tail():
    L = []
    for k in (6, 7, 8): L += sm_step(1, k)
    L.append(I("s_nop 1"))
    anchors = [mfma_pv(1, f >> 2, f & 3, 1) for f in range(8)]
    gaps = [[] for _ in range(8)]
    for i, k in enumerate(range(9, 17)): gaps[i // 2] += sm_step(1, k)
    gaps[3].append(I("s_nop 1"))
    pre0, body0 = epilogue(0)
    pre1, body1 = epilogue(1)
    gaps[4] += pre0
    n = 0
    for g in (5, 6, 7):
        gaps[g] += body0[n:n + 7]; n += 7
    L += weave(anchors, gaps)
    L += body0[n:]
    L += [I("v_accvgpr_mov_b32 %s, %s" % (ar(aQ + i), ar(aQ2 + i))) for i in range(32)]
    L += stage_read(aQ + 32, 'q1')
    L += [I("v_mov_b32 %s, %s" % (vr(vSM), vr(vSM + 2))), I("v_mov_b32 %s, %s" % (vr(vSM + 1), vr(vSM + 3)))]
    L += pre1 + [I("s_waitcnt lgkmcnt(0)")] + body1
    return L

def q_loads(soffA, soffB):
    L = [[], []]
    for q in range(2):
        for ks in range(8):
            L[q].append(I("buffer_load_dwordx4 %s, %s, %s, %s offen offset:%d" % (ar(aQ + 32 * q + 4 * ks, 4), vr(vQO), sr(S_Q, 4), soffA if q == 0 else soffB, 32 * ks)))
    return L

def setup():
    L = []
    A = lambda t: L.append(I(t))
    A("s_cmp_ge_u32 s2, 256"); A("s_cbranch_scc1 END")
    A("s_load_dwordx4 s[4:7], s[0:1], 0"); A("s_load_dwordx4 s[8:11], s[0:1], 16")
    if O.stamps: A("s_load_dwordx2 s[52:53], s[0:1], 40")
    A("v_lshrrev_b32 v1, 6, v0"); A("v_and_b32 v0, 63, v0")
    A("v_readfirstlane_b32 %s, v1" % sr(sWave))
    A("s_lshr_b32 s36, s2, 4"); A("s_lshl_b32 s36, s36, 3"); A("s_and_b32 s37, s2, 7"); A("s_add_u32 s36, s36, s37")
    A("s_lshr_b32 s37, s2, 3"); A("s_and_b32 s37, s37, 1")
    A("s_lshl_b32 s38, s36, 19")
    A("s_lshl_b32 s39, s36, 18"); A("s_lshl_b32 s37, s37, 16"); A("s_add_u32 s39, s39, s37")
    A("s_lshl_b32 %s, %s, 12" % (sr(sW4), sr(sWave)))
    A("s_lshl_b32 %s, %s, 13" % (sr(sQS), sr(sWave))); A("s_add_u32 %s, %s, %d" % (sr(sQS), sr(sQS), LDS_Q))
    A("s_mov_b32 %s, 0x%08x" % (sr(sC), f2u(128 ** -0.5 * math.log2(math.e))))
    A("s_mov_b32 %s, 0" % sr(sMode))
    A("v_and_b32 v1, 31, v0")
    A("v_lshrrev_b32 v2, 5, v0")
    A("v_and_b32 v3, 15, v0")
    A("v_xor_b32 v4, v2, v3")
    A("v_lshlrev_b32 v4, 4, v4")
    A("v_lshl_add_u32 %s, v1, 8, v4" % vr(vKA))
    for ks in range(1, 8): A("v_xor_b32 %s, %d, %s" % (vr(vKA + ks), ks << 5, vr(vKA)))
    A("v_lshlrev_b32 v4, 4, v2"); A("v_lshl_add_u32 v4, v1, 8, v4")
    A("s_lshl_b32 s40, %s, 14" % sr(sWave)); A("v_add_u32 %s, s40, v4" % vr(vQO))
    A("v_lshrrev_b32 v4, 2, v3")
    A("v_lshl_add_u32 v5, v2, 2, v4")
    A("v_lshlrev_b32 v5, 8, v5")
    A("v_bfe_u32 v6, v0, 4, 1")
    A("v_lshl_add_u32 v5, v6, 5, v5")
    A("v_and_b32 v6, 1, v0"); A("v_lshl_add_u32 v5, v6, 4, v5")
    A("v_bfe_u32 v6, v0, 1, 1"); A("v_lshl_add_u32 v5, v6, 3, v5")
    A("v_lshl_add_u32 v5, v4, 6, v5")
    A("v_add_u32 %s, 0x%x, v5" % (vr(vVA), LDS_V))
    for db in range(1, 4): A("v_xor_b32 %s, %d, %s" % (vr(vVA + db), db << 6, vr(vVA)))
    A("v_lshrrev_b32 v4, 4, v0")
    A("v_lshlrev_b32 v5, 8, v4"); A("v_add_u32 v5, %s, v5" % sr(sW4))
    A("v_xor_b32 v6, v3, v4"); A("v_lshl_add_u32 %s, v6, 4, v5" % vr(vKD))
    for j in range(1, 4): A("v_xor_b32 %s, %d, %s" % (vr(vKD + j), j << 6, vr(vKD)))
    A("v_lshlrev_b32 v6, 2, v4"); A("v_xor_b32 v6, v3, v6"); A("v_lshl_add_u32 %s, v6, 4, v5" % vr(vVD))
    A("v_mov_b32 %s, 0x%08x" % (vr(vT + 12), f2u(2.0 ** 30)))
    for i in range(4): A("v_mov_b32 %s, 0" % vr(vSM + i))
    if O.stamps:
        A("s_lshl_b32 s40, s2, 2"); A("s_add_u32 s40, s40, %s" % sr(sWave)); A("s_lshl_b32 s40, s40, 8"); A("v_mov_b32 v7, s40")
        A("s_mov_b32 s54, 0x1000000"); A("s_mov_b32 s55, 0x20000")
    A("s_waitcnt lgkmcnt(0)")
    for (srd, p, off, n) in ((S_Q, 4, 39, 196608), (S_K, 6, 38, 524288), (S_V, 8, 38, 524288), (S_O, 10, 39, 196608)):
        A("s_add_u32 %s, s%d, s%d" % (sr(srd), p, off)); A("s_addc_u32 %s, s%d, 0" % (sr(srd + 1), p + 1))
        A("s_mov_b32 %s, %d" % (sr(srd + 2), n)); A("s_mov_b32 %s, 0x20000" % sr(srd + 3))
    return L

def start():
    L = [I("RESTART:")]
    A = lambda t: L.append(I(t))
    L.append(Env(lambda e: e.update(tile=0, blk=0, it0=True)))
    A("s_mov_b32 %s, 0" % sr(sIt)); A("s_mov_b32 %s, 0" % sr(sQO)); A("s_mov_b32 %s, 8192" % sr(sQO2))
    A("s_mov_b64 %s, 0" % sr(sFail, 2))
    A("s_mul_i32 %s, %s, 12288" % (sr(sQ1), sr(sWave))); A("s_add_u32 %s, %s, 131072" % (sr(sQ1), sr(sQ1)))
    ql = q_loads(sr(sQO), sr(sQO2))
    def grp(which, t):
        A("s_mov_b32 %s, %d" % (sr(sT), t * 16384))
        L.append(set_m0(which, t)); A("s_nop 0")
        for j in range(4): L.append(dma(which, j, t, t))
    grp('K', 0); L.extend(ql[0]); grp('V', 0); L.extend(ql[1])
    grp('K', 1); grp('V', 1); grp('K', 2); grp('V', 2); grp('K', 3)
    L += stamp(0)
    A("s_waitcnt vmcnt(%d)" % (21 if O.stamps else 20)); A("s_barrier")
    L += stamp(1)
    for ks in range(8): L.append(k_read(ks, 0, 0, 0, 0))
    A("s_waitcnt lgkmcnt(4)")
    for f in range(8):
        for u in range(2): L.append(v_read(f >> 2, f & 3, u, 0, 0, 0, 0))
        if f == 3: A("s_waitcnt lgkmcnt(4)")
    A("s_waitcnt lgkmcnt(0)")
    return L

def finish():
    L = []
    A = lambda t: L.append(I(t))
    A("s_cmp_lg_u32 %s, 0" % sr(sMode)); A("s_cbranch_scc1 END")
    A("s_or_b32 s36, %s, %s" % (sr(sFail), sr(sFail + 1)))
    A("v_mov_b32 v1, s36")
    A("s_lshl_b32 s37, %s, 2" % sr(sWave)); A("s_add_u32 s37, s37, %d" % LDS_Q)
    A("v_mov_b32 v2, s37")
    A("v_and_b32 v3, 3, v0"); A("v_lshlrev_b32 v3, 2, v3"); A("v_add_u32 v3, %d, v3" % LDS_Q)
    A("ds_write_b32 v2, v1"); A("s_waitcnt lgkmcnt(0)"); A("s_barrier")
    A("ds_read_b32 v1, v3"); A("s_waitcnt lgkmcnt(0)")
    A("v_cmp_ne_u32 vcc, 0, v1"); A("s_nop 4")
    A("s_cbranch_vccnz FALLBACK")
    return L

def fallback():
    L = [I("FALLBACK:")]
    A = lambda t: L.append(I(t))
    A("s_waitcnt vmcnt(0) lgkmcnt(0)"); A("s_barrier")
    A("s_mov_b32 %s, 1" % sr(sMode)); A("s_mov_b32 %s, 0" % sr(sT)); A("s_mov_b32 %s, 0" % sr(sQO)); A("s_mov_b32 %s, 8192" % sr(sQO2))
    blk = [I("FB_BLK:")]
    ql = q_loads(sr(sQO), sr(sQO2))
    blk += ql[0] + ql[1]
    blk += [I("v_mov_b32 %s, 0xff800000" % vr(vT)), I("v_mov_b32 %s, 0xff800000" % vr(vT + 1))]
    til = [I("FB_TILE:")]
    til += [set_m0('K', 0), I("s_nop 0")]
    for j in range(4):
        d = dma('K', j, 0, 0); d.meta = None; til.append(d)
    til += [I("s_add_u32 %s, %s, 16384" % (sr(sT), sr(sT))), I("s_waitcnt vmcnt(0)"), I("s_barrier")]
    for kb in range(2):
        for ks in range(8):
            r = k_read(ks, kb, 0, kb, 0); r.meta = None; til.append(r)
        til.append(I("s_waitcnt lgkmcnt(0)"))
    til.append(I("s_barrier"))
    for kb in range(2):
        for q in range(2):
            for ks in range(8): til.append(mfma_qk(q, ks, kb))
        til.append(I("s_nop 11"))
        for q in range(2):
            for i in range(8):
                til.append(I("v_max3_f32 %s, %s, %s, %s" % (vr(vT + q), vr(vT + q), vr(vS + 16 * q + 2 * i), vr(vS + 16 * q + 2 * i + 1))))
        til.append(I("s_nop 1"))
    til += [I("s_and_b32 s36, %s, 0x3ffff" % sr(sT)), I("s_cmp_lg_u32 s36, 0"), I("s_cbranch_scc1 FB_TILE")]
    fin = [I("v_mov_b32 %s, %s" % (vr(vSM), vr(vSM + 2))), I("v_mov_b32 %s, %s" % (vr(vSM + 1), vr(vSM + 3)))]
    for q in range(2):
        fin += [I("v_mov_b32 %s, %s" % (vr(vT + 2), vr(vT + q))), I("s_nop 1"), I("v_permlane32_swap_b32 %s, %s" % (vr(vT + 2), vr(vT + q))),
                I("v_max_f32 %s, %s, %s" % (vr(vSM + 2 + q), vr(vT + 2), vr(vT + q)))]
    fin += [I("s_add_u32 %s, %s, 131072" % (sr(sQO), sr(sQO))), I("s_add_u32 %s, %s, 131072" % (sr(sQO2), sr(sQO2))),
            I("s_cmp_lt_u32 %s, 524288" % sr(sT)), I("s_cbranch_scc1 FB_BLK"), I("s_branch RESTART")]
    return L, blk, til, fin

def flatten(L, env_flags=None):
    out = []
    for x in L:
        if x.kind == 'cond': out += x.body
        else: out.append(x)
    return out

def dyn(L):
    out = []
    for x in L:
        if x.kind == 'cond':
            out.append(x)
        else: out.append(x)
    return out

def build():
    su = setup(); st = start()
    first = [I("BLOCK:")] + stamp(2) + tile_code(0, first=True, endx=[I("s_branch P1")])
    back = [I("BACK:"), I("s_cmp_eq_u32 %s, 1" % sr(sIt)), I("s_cbranch_scc1 Q0STUB"), I("s_cmp_eq_u32 %s, 3" % sr(sIt)), I("s_cbranch_scc1 Q1STUB")]
    P = []
    for ph in range(4):
        endx = None; ex = None
        if ph == 3:
            ex = [(29, [I("s_add_u32 %s, %s, 1" % (sr(sIt), sr(sIt)))]), (30, [I("s_and_b32 s36, %s, 3" % sr(sIt))])]
            endx = [I("s_cbranch_scc1 BACK")]
        P.append([I("P%d:" % ph)] + tile_code(ph, endx=endx, extraB=ex))
    tl = [I("TAIL:")] + stamp(3) + tail() + stamp(4)
    tl2 = [I("s_add_u32 %s, %s, 131072" % (sr(sQO), sr(sQO))), I("s_add_u32 %s, %s, 131072" % (sr(sQO2), sr(sQO2))),
           I("s_cmp_eq_u32 %s, 4" % sr(sIt)), I("s_cbranch_scc1 BLOCK")]
    if O.stamps: tl2 = [I("v_add_u32 v7, 32, v7")] + tl2
    fin = finish()
    end = [I("END:"), I("s_endpgm")]
    q0 = [I("Q0STUB:")] + stage_dma('q0') + [I("s_branch P0")]
    q1 = [I("Q1STUB:")] + stage_read(aQ2, 'q0') + [I("s_waitcnt lgkmcnt(0)")] + stage_dma('q1') + [I("s_branch P0")]
    fb, fblk, ftil, ffin = fallback()
    static = su + st + first + back + P[0] + P[1] + P[2] + P[3] + tl + tl2 + fin + end + q0 + q1 + fb + fblk + ftil + ffin
    def main_trace():
        T = st[:]
        for blk in range(2):
            T.append(Env(lambda e, b=blk: e.update(blk=b, it0=(b == 0))))
            T += first + P[1] + P[2] + P[3]
            for it in range(1, 4):
                if blk == 0 and it == 1: T += back[:3] + q0
                elif blk == 0 and it == 3: T += back + q1
                else: T += back
                T += P[0] + P[1] + P[2] + P[3]
            T += tl + tl2
        return T
    T = su + main_trace() + fin + fb
    for blk in range(2):
        T += fblk + ftil + ftil + ftil + ffin
    T += main_trace() + fin[:2]
    env = {}
    tr = []
    e2 = {}
    for x in T:
        if x.kind == 'env':
            x.fn(e2); tr.append(x)
        elif x.kind == 'cond':
            if e2[x.flag]: tr += x.body
        else: tr.append(x)
    errs = check_trace(tr, env)
    return flatten(static), errs

HEADER = open('standalone__gqa_softmax__near_ridge.s.ref').read().split('; Override')[0]

def emit(static):
    out = [HEADER.rstrip('\n')]
    out.append("; @launch grid=(256,1,1) block=(256,1,1) lds=163840")
    out.append('.amdgcn_target "amdgcn-amd-amdhsa--gfx950"\n.text\n.globl %s\n.p2align 8\n.type %s,@function\n%s:' % (NAME, NAME, NAME))
    for x in static:
        if x.kind == 'env': continue
        out.append(x.text if x.kind == 'label' else "    " + x.text)
    out.append('.section .rodata,"a"\n.p2align 6\n.amdhsa_kernel %s\n  .amdhsa_next_free_vgpr 512\n  .amdhsa_next_free_sgpr 102\n  .amdhsa_accum_offset 256\n  .amdhsa_group_segment_fixed_size 0\n  .amdhsa_kernarg_size 48\n  .amdhsa_user_sgpr_count 2\n  .amdhsa_user_sgpr_kernarg_segment_ptr 1\n  .amdhsa_system_sgpr_workgroup_id_x 1\n.end_amdhsa_kernel' % NAME)
    return "\n".join(out) + "\n"

if __name__ == "__main__":
    outp = sys.argv[1]
    for a in sys.argv[2:]:
        k, v = a.split('=')
        cur = getattr(O, k)
        setattr(O, k, (v not in ('0', 'False')) if isinstance(cur, bool) else type(cur)(v))
    static, errs = build()
    seen = set()
    for e in errs:
        if e not in seen:
            seen.add(e); print(e)
    print("errors:", len(errs), "unique", len(seen))
    open(outp, 'w').write(emit(static))
```

```python
import re

TRANS = ("v_exp_f32", "v_log_f32", "v_rcp_f32", "v_rsq_f32", "v_sqrt_f32", "v_sin_f32", "v_cos_f32")

def parse_regs(op):
    op = op.strip()
    op = op.lstrip('-')
    op = op.strip('|')
    m = re.fullmatch(r'([vas])(\d+)', op)
    if m: return [(m.group(1), int(m.group(2)))]
    m = re.fullmatch(r'([vas])\[(\d+):(\d+)\]', op)
    if m: return [(m.group(1), i) for i in range(int(m.group(2)), int(m.group(3)) + 1)]
    if op == 'vcc': return [('s', 'vcc_lo'), ('s', 'vcc_hi')]
    if op in ('vcc_lo', 'vcc_hi', 'm0', 'exec_lo', 'exec_hi'): return [('s', op)]
    if op == 'exec': return [('s', 'exec_lo'), ('s', 'exec_hi')]
    return []

class Inst:
    __slots__ = ("text", "op", "kind", "rd", "wr", "meta", "srcC", "srcAB", "states", "sdata")
    def __init__(self, text, meta=None):
        self.text = text
        self.meta = meta
        self.srcC = set(); self.srcAB = set(); self.sdata = set()
        t = text.split(';')[0].strip()
        if t.endswith(':') or t.startswith('.') or t == '':
            self.op = 'label'; self.kind = 'label'; self.rd = set(); self.wr = set(); self.states = 0
            return
        parts = t.split(None, 1)
        op = parts[0]; self.op = op
        rest = parts[1] if len(parts) > 1 else ''
        ops = [x.strip() for x in rest.split(',')] if rest else []
        mods = ''
        if ops:
            l = ops[-1].split(None, 1)
            ops[-1] = l[0]
            mods = l[1] if len(l) > 1 else ''
        R = [parse_regs(o) for o in ops]
        rd = set(); wr = set(); self.states = 1
        if op.startswith('v_smfmac'):
            self.kind = 'mfma'
            wr |= set(R[0]); rd |= set(R[0]) | set(R[1]) | set(R[2]) | set(R[3])
            self.srcC = set(R[0]); self.srcAB = set(R[1]) | set(R[2]) | set(R[3])
        elif op.startswith('v_mfma'):
            self.kind = 'mfma'
            wr |= set(R[0]); rd |= set(R[1]) | set(R[2]) | set(R[3])
            self.srcC = set(R[3]); self.srcAB = set(R[1]) | set(R[2])
        elif op.startswith('v_'):
            self.kind = 'trans' if op.replace('_e32', '').replace('_e64', '') in TRANS else 'valu'
            if op.startswith('v_permlane') and 'swap' in op:
                wr |= set(R[0]) | set(R[1]); rd |= set(R[0]) | set(R[1]); self.kind = 'perm'
            elif op.startswith('v_nop'):
                pass
            else:
                wr |= set(R[0])
                for r in R[1:]: rd |= set(r)
                if op.startswith('v_fmac') or op.startswith('v_mac'): rd |= set(R[0])
                if op.startswith('v_cndmask') and len(ops) == 3: rd |= set(parse_regs('vcc'))
                if op.startswith('v_readfirstlane') or op.startswith('v_readlane'): self.kind = 'rfl'
                if 'dpp' in op or 'row_' in mods or 'quad_perm' in mods: self.kind = 'dpp'
        elif op.startswith('ds_read'):
            self.kind = 'dsr'; wr |= set(R[0]); rd |= set(R[1])
        elif op.startswith('ds_write'):
            self.kind = 'dsw'
            for r in R: rd |= set(r)
        elif op.startswith('buffer_load') or op.startswith('global_load'):
            if re.search(r'\blds\b', mods):
                self.kind = 'dma'
                for r in R: rd |= set(r)
                rd.add(('s', 'm0'))
            else:
                self.kind = 'vld'; wr |= set(R[0])
                for r in R[1:]: rd |= set(r)
        elif op.startswith('buffer_store') or op.startswith('global_store') or op.startswith('buffer_atomic'):
            self.kind = 'vst'
            for r in R: rd |= set(r)
            if 'x4' in op or 'x3' in op:
                self.sdata = set(R[0]) if op.startswith('buffer') else set(R[1])
        elif op.startswith('s_load') or op.startswith('s_memtime') or op.startswith('s_buffer_load') or op.startswith('s_memrealtime'):
            self.kind = 'smem'; wr |= set(R[0])
            for r in R[1:]: rd |= set(r)
        elif op == 's_nop':
            self.kind = 'nop'; self.states = int(ops[0], 0) + 1
        elif op == 's_waitcnt':
            self.kind = 'wait'
        elif op == 's_barrier':
            self.kind = 'barrier'
        elif op.startswith('s_cbranch') or op == 's_branch' or op == 's_endpgm' or op == 's_setprio' or op == 's_sleep':
            self.kind = 'ctl'
            if 'vcc' in op: rd |= set(parse_regs('vcc'))
        elif op.startswith('s_cmp') or op.startswith('s_bitcmp'):
            self.kind = 'salu'
            for r in R: rd |= set(r)
        elif op.startswith('s_setpc'):
            self.kind = 'ctl'; rd |= set(R[0])
        elif op.startswith('s_'):
            self.kind = 'salu'; wr |= set(R[0])
            for r in R[1:]: rd |= set(r)
            if 'saveexec' in op: wr |= set(parse_regs('exec'))
        else:
            raise ValueError("unknown op: " + text)
        self.rd = rd; self.wr = wr

class Env:
    __slots__ = ("fn",)
    kind = 'env'; text = None
    def __init__(self, fn): self.fn = fn

VALUK = ('valu', 'trans', 'perm', 'rfl', 'dpp')
VMEMK = ('dma', 'vld', 'vst')

def required_gap(p, c):
    need = 0
    pk, ck = p.kind, c.kind
    if pk == 'mfma':
        P8 = '32x32x16' in p.op or 'smfmac' in p.op
        big = 12 if P8 else 8
        ov = 10 if P8 else 6
        war = 7 if P8 else 3
        D = p.wr
        if ck == 'mfma':
            if D & c.srcAB: need = max(need, big)
            if D & c.srcC:
                if not (c.srcC == D and c.op == p.op): need = max(need, ov)
            if (D & c.wr) and not (c.srcC == D and c.op == p.op): need = max(need, ov)
        elif ck in VALUK:
            if D & (c.rd | c.wr): need = max(need, big)
            if p.srcC & c.wr: need = max(need, war)
        elif ck in ('dsr', 'dsw', 'dma', 'vld', 'vst'):
            if D & (c.rd | c.wr): need = max(need, big)
            if p.srcC & c.wr: need = max(need, war)
    elif pk in VALUK:
        vw = {r for r in p.wr if r[0] in 'va'}
        sw = {r for r in p.wr if r[0] == 's'}
        if ck == 'mfma' and vw & c.rd: need = max(need, 2)
        if pk == 'trans' and ck in VALUK and ck != 'trans' and vw & c.rd: need = max(need, 1)
        if pk == 'trans' and ck in ('dsw', 'vst', 'dsr', 'vld', 'dma') and vw & c.rd: need = max(need, 1)
        if ck in ('perm', 'dpp') and vw & c.rd: need = max(need, 2)
        if ck == 'rfl' and vw & c.rd: need = max(need, 1)
        if sw:
            if ck in VALUK and sw & c.rd: need = max(need, 4 if ck == 'rfl' else 2)
            if ck in VMEMK and sw & c.rd: need = max(need, 5)
            if ck in ('salu', 'ctl', 'smem') and sw & c.rd: need = max(need, 5 if ck == 'ctl' else 1)
            if {('s', 'exec_lo'), ('s', 'exec_hi')} & sw and ck in ('mfma', 'dpp', 'perm', 'rfl'): need = max(need, 5)
    elif pk == 'salu':
        if ('s', 'm0') in p.wr and ck == 'dma': need = max(need, 1)
    elif pk == 'vst':
        if p.sdata and (p.sdata & c.wr): need = max(need, 2)
    return need

def parse_wait(text):
    vm = re.search(r'vmcnt\((\d+)\)', text); lg = re.search(r'lgkmcnt\((\d+)\)', text)
    return (int(vm.group(1)) if vm else None, int(lg.group(1)) if lg else None)

class CheckError(Exception): pass

def check_trace(trace, env, verbose=False):
    errs = []
    hist = []
    pos = 0
    vmq = []
    lgq = []
    dma_state = {}
    reads_pending = {}
    for idx, ins in enumerate(trace):
        if ins.kind == 'env':
            ins.fn(env); continue
        if ins.kind == 'label': continue
        for (p, ppos) in hist:
            need = required_gap(p, ins)
            have = pos - ppos - 1 + 0
            if need > have:
                errs.append("HAZARD need %d have %d: [%s] -> [%s]" % (need, have, p.text, ins.text))
        for q, nm in ((vmq, 'vm'), (lgq, 'lgkm')):
            for (p, tag) in q:
                if p.wr & (ins.rd | ins.wr) and ins.kind != 'wait':
                    errs.append("%s not waited: [%s] -> [%s]" % (nm, p.text, ins.text))
        meta = ins.meta(env) if callable(ins.meta) else ins.meta
        if ins.kind in VMEMK:
            vmq.append((ins, meta))
            if len(vmq) > 63: errs.append("vmcnt overflow at " + ins.text)
            if ins.kind == 'dma' and meta is not None:
                region, tag, shared = meta
                st = reads_pending.get(region)
                if st is not None and st != ('barriered' if shared else 'done') and not (not shared and st == 'barriered'):
                    errs.append("LDS WAR: dma %s into %s while reads %s" % (tag, region, st))
                d = dma_state.setdefault(region, {})
                if d.get('tag') != tag:
                    d.clear(); d['tag'] = tag
                d['inflight'] = d.get('inflight', 0) + 1
                d['visible'] = False
                d['shared'] = shared
        elif ins.kind in ('dsr', 'dsw', 'smem'):
            lgq.append((ins, meta))
            if len(lgq) > 15 and False: errs.append("lgkm overflow at " + ins.text)
            if ins.kind == 'dsr' and meta is not None:
                region, tag = meta
                d = dma_state.get(region)
                if d is None or d['tag'] != tag:
                    errs.append("LDS RAW: read of %s expects %s but holds %s" % (region, tag, d and d['tag']))
                elif d['inflight'] > 0 or (d['shared'] and not d['visible']):
                    errs.append("LDS RAW: read of %s/%s not landed/visible [%s]" % (region, tag, ins.text))
                reads_pending[region] = 'inflight'
        elif ins.kind == 'wait':
            vm, lg = parse_wait(ins.text)
            if vm is not None:
                while len(vmq) > vm:
                    p, tag = vmq.pop(0)
                    if p.kind == 'dma' and tag is not None:
                        d = dma_state[tag[0]]
                        if d['tag'] == tag[1]: d['inflight'] -= 1
            if lg is not None:
                if any(p.kind == 'smem' for p, _ in lgq) and lg != 0:
                    errs.append("counted lgkmcnt with smem outstanding: " + ins.text)
                while len(lgq) > lg:
                    lgq.pop(0)
                for region in list(reads_pending):
                    if reads_pending[region] == 'inflight' and not any(t is not None and p.kind == 'dsr' and t[0] == region for p, t in lgq):
                        reads_pending[region] = 'done'
        elif ins.kind == 'barrier':
            for region, d in dma_state.items():
                if d.get('inflight', 0) == 0: d['visible'] = True
            for region in reads_pending:
                if reads_pending[region] == 'done': reads_pending[region] = 'barriered'
        hist.append((ins, pos + ins.states - 1))
        pos += ins.states
        while hist and pos - hist[0][1] > 24: hist.pop(0)
    return errs
```

```python
import sys, struct, math
from asmlib import Inst, Env, check_trace, parse_regs, VMEMK

NAME = "standalone__gqa_softmax__near_ridge_kernel"
def f2u(x): return struct.unpack('<I', struct.pack('<f', x))[0]

class Opt:
    stamps = False
    kv_mod = ""
    q_mod = ""
    store_mod = ""
    drop = ""
    prefetch = False
    bar = 21
    dma_lo = 25; dma_hi = 66
    vlo_lo = 33; vlo_hi = 66
    k_lo = 67; k_hi = 92
    pro = "KQQ,VQ,QK,V,KV"
    nofb = False
O = Opt()

S_Q, S_K, S_V, S_O = 12, 16, 20, 24
sC, sT, sM, sM2, sD, sEnd, sMask, sLo, sQ1, sO1, sP16, sWave = range(28, 40)
sC2 = 40
sTmp = 42
sStamp = 48
S_WS = 52

vKA, vVA0, vVA1, vQA, vLin, vEW, vER, vBad = range(2, 10)
vDM = 10
vIDX = 14
vQW = 15
vONE = 16
vS = 20
vP = 36
vL = 52
vR = 68
vE = 84
vF = 100
vT = 116
vSt = 126
vO = 128
aQ, aK, aVH, aVL = 0, 64, 128, 160
KRING, VRING = 65536, 114688
NM = 33

def vr(b, n=1): return "v%d" % b if n == 1 else "v[%d:%d]" % (b, b + n - 1)
def ar(b, n=1): return "a%d" % b if n == 1 else "a[%d:%d]" % (b, b + n - 1)
def sr(b, n=1): return "s%d" % b if n == 1 else "s[%d:%d]" % (b, b + n - 1)
I = Inst
def regs(s): return set(parse_regs(s))

class Wait:
    kind = 'autowait'; op = 's_waitcnt'
    def __init__(self, vm=None, lg=None):
        self.vm = vm; self.lg = lg; self.nvm = None; self.nlg = None; self.inst = None
    @property
    def text(self): return self.inst.text if self.inst else None
def w_regs(s):
    r = regs(s)
    return lambda p, tag, e: bool(p.wr & r)
def w_dma(which, dt):
    return lambda p, tag, e: p.kind == 'dma' and tag is not None and tag[0][0] in which and tag[1] <= e['tile'] + dt
def w_all(p, tag, e): return True

def vfrag(db, h, par):
    return (aVL + 32 * par + 8 * db + 4 * h) if db < 4 else (aVH + 8 * (db - 4) + 4 * h)
def mfma_qk(q, y, ks):
    D = vr(vS + 4 * y, 4)
    return I("v_mfma_f32_16x16x32_bf16 %s, %s, %s, %s" % (D, ar(aK + 16 * y + 4 * ks, 4), ar(aQ + 16 * q + 4 * ks, 4), "0" if ks == 0 else D))
def mfma_pv(q, db, h, par, pb, czero=False):
    D = vr(vO + 32 * q + 4 * db, 4)
    return I("v_mfma_f32_16x16x32_bf16 %s, %s, %s, %s" % (D, ar(vfrag(db, h, par), 4), vr(vP + 8 * pb + 4 * h, 4), "0" if czero else D))
def mfma_l(q, pb):
    return I("v_smfmac_f32_16x16x64_bf16 %s, %s, %s, %s" % (vr(vL + 4 * q, 4), vr(vONE, 4), vr(vP + 8 * pb, 8), vr(vIDX)))
def exp(e): return I("v_exp_f32 %s, %s" % (vr(vS + e), vr(vS + e)))
def cvtp(e, pb): return I("v_cvt_pk_bf16_f32 %s, %s, %s" % (vr(vP + 8 * pb + e // 2), vr(vS + e - 1), vr(vS + e)))

def k_read(i, dt, addr=vKA, chk=True):
    y, ks = i >> 2, i & 3
    return I("ds_read_b128 %s, %s offset:%d" % (ar(aK + 4 * i, 4), vr(addr), ks * 256 + y * 4096),
             meta=(lambda e: (('K', e['ka']), e['tile'] + dt)) if chk else None)
def v_read(db, h, u, par, dt, chk=True):
    y = 2 * h + u
    return I("ds_read_b64_tr_b16 %s, %s offset:%d" % (ar(vfrag(db, h, par) + 2 * u, 2), vr(vVA0 + (db & 1)), (db >> 1) * 256 + y * 4096),
             meta=(lambda e: (('V', e['va%d' % (db & 1)]), e['tile'] + dt)) if chk else None)
def q_read(q, ks):
    return I("ds_read_b128 %s, %s offset:%d" % (ar(aQ + 16 * q + 4 * ks, 4), vr(vQA), ks * 256 + q * 4096))
def dma(which, j):
    srd = S_K if which == 'K' else S_V
    return I("buffer_load_dwordx4 %s, %s, %s offen offset:%d %slds" % (vr(vDM + j), sr(srd, 4), sr(sT), j * 1024, O.kv_mod),
             meta=lambda e: (e['m0'], e['sT'], True))
def set_m0(which):
    if which == 'K': i = I("s_mov_b32 m0, %s" % sr(sM))
    else: i = I("s_add_u32 m0, %s, %d" % (sr(sM), VRING - KRING))
    return [i, Env(lambda e: e.__setitem__('m0', (which, e['sM'])))]
def inc(key, mod=None):
    return Env(lambda e: e.__setitem__(key, (e[key] + 1) % mod if mod else e[key] + 1))
def delta_ops():
    return [I("s_cmp_eq_u32 %s, %s" % (sr(sM), sr(sM2))), I("s_cselect_b32 %s, 0xffff8000, %s" % (sr(sD), sr(sP16))),
            Env(lambda e: e.__setitem__('dfrom', e['sM']))]
def adv(reg, key):
    def f(e):
        assert e[key] == e['dfrom'], (key, e)
        e[key] = (e[key] + 1) % 3
    if key == 'sM': return [I("s_add_u32 %s, %s, %s" % (sr(sM), sr(sM), sr(sD))), Env(f)]
    return [I("v_add_u32 %s, %s, %s" % (vr(reg), sr(sD), vr(reg))), Env(f)]
def dma_seq():
    U = []
    for w in 'KV':
        U.append(set_m0(w))
        for j in range(4): U.append([dma(w, j)])
    U.append([I("s_add_u32 %s, %s, 16384" % (sr(sT), sr(sT))), inc('sT')])
    U.append(adv(None, 'sM'))
    return U

def q_load(dst, j, soff):
    return I("buffer_load_dwordx4 %s, %s, %s, %s offen offset:%d%s" % (vr(dst + 4 * j, 4), vr(vDM + j), sr(S_Q, 4), soff, j * 1024, O.q_mod))
def conv(r, k, pk=False):
    t = vT + 2 * (k & 1)
    L = [I("v_lshlrev_b32 %s, 16, %s" % (vr(t), vr(r))), I("v_and_b32 %s, %s, %s" % (vr(t + 1), sr(sMask), vr(r)))]
    if pk: L.append(I("v_pk_mul_f32 %s, %s, %s" % (vr(t, 2), vr(t, 2), sr(sC2, 2))))
    else: L += [I("v_mul_f32 %s, %s, %s" % (vr(t), sr(sC), vr(t))), I("v_mul_f32 %s, %s, %s" % (vr(t + 1), sr(sC), vr(t + 1)))]
    L.append(I("v_cvt_pk_bf16_f32 %s, %s, %s" % (vr(r), vr(t), vr(t + 1))))
    return L
def conv_block(src, addr, off, pk=False, after=None):
    L = []
    for j in range(4):
        L.append(Wait(vm=w_regs(vr(src + 4 * j, 4))))
        for i in range(4): L += conv(src + 4 * j + i, i, pk)
        L.append(I("ds_write_b128 %s, %s offset:%d" % (vr(addr), vr(src + 4 * j, 4), off + j * 1024)))
        if after: L += after(j)
    return L

def epilogue(q, check=True, zero=False, pk=False):
    t = vT + 4
    L = [I("v_add_f32 %s, %s, %s" % (vr(t), vr(vL + 4 * q), vr(vL + 4 * q + 1))), I("v_rcp_f32 %s, %s" % (vr(t + 2), vr(t)))]
    if check: L += [I("v_subrev_u32 %s, %s, %s" % (vr(t), sr(sLo), vr(t))), I("v_max_u32 %s, %s, %s" % (vr(vBad), vr(vBad), vr(t)))]
    else: L += [I("s_nop 0")]
    if zero: L += [I("v_mov_b32 %s, 0" % vr(vL + 4 * q)), I("v_mov_b32 %s, 0" % vr(vL + 4 * q + 1))]
    for db in range(8):
        o = vO + 32 * q + 4 * db
        if pk:
            for i in (0, 2): L.append(I("v_pk_mul_f32 %s, %s, %s op_sel_hi:[1,0]" % (vr(o + i, 2), vr(o + i, 2), vr(t + 2, 2))))
        else:
            for i in range(4): L.append(I("v_mul_f32 %s, %s, %s" % (vr(o + i), vr(t + 2), vr(o + i))))
        for i in range(2): L.append(I("v_cvt_pk_bf16_f32 %s, %s, %s" % (vr(vE + 2 * db + i), vr(o + 2 * i), vr(o + 2 * i + 1))))
        L.append(I("ds_write_b64 %s, %s offset:%d" % (vr(vEW), vr(vE + 2 * db, 2), 32 * db)))
    for j in range(4): L.append(I("ds_read_b128 %s, %s offset:%d" % (vr(vF + 4 * j, 4), vr(vER), j * 1088)))
    S = []
    for j in range(4):
        S.append(Wait(lg=w_regs(vr(vF + 4 * j, 4))))
        S.append(I("buffer_store_dwordx4 %s, %s, %s, %s offen offset:%d%s" % (vr(vF + 4 * j, 4), vr(vLin), sr(S_O, 4), sr(sO1), j * 1024, O.store_mod)))
    S.append(I("s_add_u32 %s, %s, 4096" % (sr(sO1), sr(sO1))))
    return L, S

def cost(x):
    if x.kind in ('env', 'label'): return 0
    if x.kind == 'trans': return 8
    return 4
MEMK = ('dsr', 'dsw', 'dma', 'vld', 'vst')

class TL:
    def __init__(self, anchors):
        self.a = anchors; self.n = len(anchors)
        self.g = [[] for _ in anchors]
        self.isexp = [False] * self.n
    def used(self, g): return sum(cost(x) for u in self.g[g] for x in u)
    def put(self, g, u, front=False):
        if not isinstance(u, list): u = [u]
        if front: self.g[g].insert(0, u)
        else: self.g[g].append(u)
        if any(x.kind == 'trans' for x in u): self.isexp[g] = True
    def spread(self, units, lo, hi, mingap=None, front=True, pack=False):
        units = [u if isinstance(u, list) else [u] for u in units]
        need = sum(cost(x) for u in units for x in u)
        cand = [g for g in range(lo, hi) if not self.isexp[g]]
        cap = {g: max(0, 8 - self.used(g)) for g in cand}
        tot = sum(cap.values())
        k = 0
        while tot < need:
            deficit = (need - tot + 3) // 4
            if deficit >= len(cand):
                for g in cand: cap[g] += 4
                tot += 4 * len(cand)
            else:
                for i in range(deficit): cap[cand[int((i + 0.5) * len(cand) / deficit)]] += 4
                tot += 4 * deficit
        slots = []
        for g in cand: slots += [g] * (cap[g] // 4)
        ns = need // 4
        pos = 0; ins = {}
        last = lo
        for idx, u in enumerate(units):
            c = sum(cost(x) for x in u) // 4
            si = pos if pack else int(pos * len(slots) / max(ns, 1))
            g = slots[min(si, len(slots) - 1)]
            if mingap and g < mingap(idx):
                g = min(x for x in cand if x >= mingap(idx))
            g = max(g, last); last = g
            ins.setdefault(g, []).append(u)
            pos += c
        for g, us in ins.items():
            if front: self.g[g] = us + self.g[g]
            else: self.g[g] += us
    def flat(self):
        out = []
        for g in range(self.n):
            if self.a[g] is not None: out.append(self.a[g])
            for u in self.g[g]: out += u
        return out
    def cycles(self):
        return sum(max(16 if self.a[g] is not None else 0, (8 if self.a[g] is not None else 0) + self.used(g)) for g in range(self.n))

def stamp_ops(kind):
    if not O.stamps: return []
    if kind == 'pre': return [I("s_memtime s[48:49]")]
    return [I("s_memtime s[50:51]"), I("s_waitcnt lgkmcnt(0)"), I("s_mov_b32 m0, s56"), I("s_add_u32 s56, s56, 1"), I("v_writelane_b32 %s, s48, m0" % vr(vSt + 1)),
            I("s_add_u32 m0, m0, 32"), I("s_nop 0"), I("v_writelane_b32 %s, s50, m0" % vr(vSt + 1))]
def stamp(idx):
    if not O.stamps: return []
    return [I("s_memtime %s" % sr(sStamp, 2)), I("s_waitcnt lgkmcnt(0)"), I("v_writelane_b32 %s, %s, %d" % (vr(vSt), sr(sStamp), idx))]

def base_tile(par, czero=False, last=False):
    A = []
    for p in range(4):
        if last and p == 3:
            A += [mfma_pv(p, db, 0, par, 1 - (p & 1)) for db in range(8)]
            A += [mfma_l(p, 1 - (p & 1))]
            A += [mfma_pv(p, db, 1, par, 1 - (p & 1)) for db in range(8)]
            continue
        for a in range(16): A.append(mfma_qk((p + 1) & 3, a >> 2, a & 3))
        for a in range(16): A.append(mfma_pv(p, a >> 1, a & 1, par, 1 - (p & 1), czero and not (a & 1)))
        A.append(mfma_l(p, 1 - (p & 1)))
    T = TL(A)
    for p in range(-1, 4):
        if last and p == 3: continue
        for e in range(16):
            g = NM * p + 8 + 2 * e + (1 if e >= 12 else 0)
            if last and p == 2 and e >= 12: g = NM * 3 + (e - 12) + (e - 12) // 2
            if 0 <= g < T.n:
                T.put(g, exp(e))
                if e & 1: T.put(g + 1, cvtp(e, p & 1))
    return T

def vhi_reads(par_next, dt):
    return [v_read(db, h, u, par_next, dt) for db in range(4, 8) for h in range(2) for u in range(2)]
def vlo_reads(par_next, dt):
    return [v_read(db, h, u, par_next, dt) for db in range(4) for h in range(2) for u in range(2)]

def barrier(vm, lg=None):
    return stamp_ops('pre') + [Wait(vm=vm, lg=(w_all if O.stamps else lg)), I("s_barrier")] + stamp_ops('post')

def steady(T, par, carry=True, nxt=True):
    if carry:
        T.spread(vhi_reads(par, 0)[8:], 0, 12, pack=True)
    if not nxt:
        T.put(21, [Wait(lg=w_regs(ar(aVH, 32)))])
        return
    bar = O.bar
    if bar > 23: T.put(21, [Wait(lg=w_regs(ar(aVH, 32)))])
    T.put(bar, barrier(w_dma('KV', 1), w_regs(ar(aVH, 32))))
    T.spread([delta_ops()[:1], delta_ops()[1:], adv(vVA0, 'va0'), adv(vVA1, 'va1'), adv(vKA, 'ka')], 13, 21, pack=True, front=False)
    T.spread(vhi_reads(1 - par, 1)[:8], 3 * NM + 25, 4 * NM, pack=True)
    T.spread([k_read(i, 1) for i in range(16)], O.k_lo, O.k_hi, mingap=lambda i: 2 * NM + i)
    T.put(3 * NM - 1, [Wait(lg=w_regs(ar(aK, 64)))])
    T.spread(vlo_reads(1 - par, 1), O.vlo_lo, O.vlo_hi)
    if O.vlo_hi > O.k_hi: T.put(4 * NM - 1, [Wait(lg=w_regs(ar(aVL, 64)))])
    T.spread(dma_seq(), O.dma_lo, O.dma_hi)

def fix_m0(L):
    i = 0
    while i < len(L):
        x = L[i]
        if x.kind == 'salu' and ('s', 'm0') in x.wr:
            j = i + 1
            while L[j].kind == 'env': j += 1
            if L[j].kind == 'dma':
                k = i - 1
                while L[k].kind == 'env': k -= 1
                assert L[k].kind in ('mfma', 'valu', 'trans', 'dsr'), L[k].text
                L[k:j] = L[i:j] + L[k:i]
        i += 1
    return L

def check_scc(T):
    last = None; errs = []
    for x in T:
        if x.kind in ('env', 'label'): continue
        op = x.op
        if op.startswith('s_cselect') or op.startswith('s_cbranch_scc'):
            if not last.startswith('s_cmp'): errs.append("SCC: %s after %s" % (x.text, last))
        if op.startswith('s_addc') and not last.startswith('s_add_u32'): errs.append("SCC addc " + x.text)
        if x.kind == 'salu' and not (op.startswith('s_mov') or op.startswith('s_cselect') or op.startswith('s_mul') or op.startswith('s_getpc')): last = x.text
    return errs

def finish_tile(T):
    L = fix_m0(T.flat())
    if O.drop:
        dl = O.drop.split(',')
        def keep(x):
            if 'dma' in dl and x.kind == 'dma': return False
            if 'k' in dl and x.op == 'ds_read_b128': return False
            if 'v' in dl and x.op == 'ds_read_b64_tr_b16': return False
            if 'bar' in dl and x.kind == 'barrier': return False
            return True
        L = [x for x in L if x.kind in ('env', 'label') or keep(x)]
    return L + [inc('tile')]

INFO = []
def tile_plain(par, endx=None, extra=None, name=""):
    T = base_tile(par)
    steady(T, par)
    if endx: T.put(T.n - 4, endx[:1]); T.put(T.n - 1, endx[1:])
    if extra: T.spread(extra, 0, T.n - 1, front=False)
    INFO.append((name, T.cycles()))
    return finish_tile(T)

def pro_group(spec, st):
    L = []
    for c in spec:
        if c == 'Q':
            q = st['Q']; st['Q'] += 1
            L += [q_load(vO + 32 * q, j, sr(sQ1)) for j in range(4)]
            L.append(I("s_add_u32 %s, %s, 4096" % (sr(sQ1), sr(sQ1))))
        else:
            t = st[c]; st[c] += 1
            base = t * 16384 + (VRING - KRING if c == 'V' else 0)
            L += [I("s_add_u32 m0, %s, %d" % (sr(sM), base)), I("s_mov_b32 %s, %d" % (sr(sT), t * 16384)),
                  Env(lambda e, c=c, t=t: e.update(m0=(c, t), sT=t))]
            L += [dma(c, j) for j in range(4)]
    return L

def setup():
    L = []
    A = lambda t: L.append(I(t))
    A("s_cmp_ge_u32 s2, 256"); A("s_cbranch_scc1 END")
    if O.stamps:
        A("s_memrealtime s[58:59]"); A("s_waitcnt lgkmcnt(0)"); A("v_writelane_b32 %s, s58, 4" % vr(vSt))
    L += stamp(3)
    A("s_load_dwordx4 s[4:7], s[0:1], 0"); A("s_load_dwordx4 s[8:11], s[0:1], 16")
    if O.stamps: A("s_load_dwordx2 s[52:53], s[0:1], 40")
    A("v_lshrrev_b32 v1, 6, v0"); A("v_and_b32 v0, 63, v0")
    A("v_readfirstlane_b32 %s, v1" % sr(sWave))
    A("s_lshr_b32 s42, s2, 4"); A("s_lshl_b32 s42, s42, 3"); A("s_and_b32 s43, s2, 7"); A("s_add_u32 s42, s42, s43")
    A("s_lshr_b32 s43, s2, 3"); A("s_and_b32 s43, s43, 1")
    A("s_lshl_b32 s44, s42, 19")
    A("s_lshl_b32 s45, s42, 18"); A("s_lshl_b32 s43, s43, 16"); A("s_add_u32 s45, s45, s43")
    A("s_lshl_b32 s46, %s, 12" % sr(sWave))
    A("s_add_u32 %s, s46, %d" % (sr(sM), KRING))
    A("s_mul_i32 %s, %s, 12288" % (sr(sQ1), sr(sWave)))
    t = vT
    A("v_bfe_u32 %s, v0, 2, 2" % vr(t))
    A("v_lshrrev_b32 %s, 4, v0" % vr(t + 1))
    A("v_and_b32 %s, 3, v0" % vr(t + 2))
    A("v_lshlrev_b32 %s, 8, %s" % (vr(vDM), vr(t)))
    A("v_lshl_add_u32 %s, %s, 6, %s" % (vr(vDM), vr(t + 1), vr(vDM)))
    A("v_lshl_add_u32 %s, %s, 4, %s" % (vr(vDM), vr(t + 2), vr(vDM)))
    A("v_add_u32 %s, s46, %s" % (vr(vDM), vr(vDM)))
    for j in range(1, 4): A("v_xor_b32 %s, %d, %s" % (vr(vDM + j), ((4 - j) & 3) * 16, vr(vDM)))
    A("s_lshl_b32 s47, %s, 14" % sr(sWave))
    for srd, n in ((S_Q, 196608), (S_K, 524288), (S_V, 524288), (S_O, 196608)):
        if srd == S_Q: A("s_add_u32 %s, s47, %d" % (sr(srd + 2), 131072 + 16384))
        else: A("s_mov_b32 %s, %d" % (sr(srd + 2), n))
        A("s_mov_b32 %s, 0x20000" % sr(srd + 3))
    A("s_waitcnt lgkmcnt(0)")
    for (srd, p, off) in ((S_K, 6, 44), (S_Q, 4, 45), (S_V, 8, 44), (S_O, 10, 45)):
        A("s_add_u32 %s, s%d, s%d" % (sr(srd), p, off)); A("s_addc_u32 %s, s%d, 0" % (sr(srd + 1), p + 1))
    L2 = []
    A = lambda t: L2.append(I(t))
    A("s_add_u32 %s, %s, 32768" % (sr(sM2), sr(sM)))
    A("s_mov_b32 %s, 0x%08x" % (sr(sC), f2u(128 ** -0.5 * math.log2(math.e))))
    A("s_mov_b32 %s, %s" % (sr(sC2), sr(sC))); A("s_mov_b32 %s, %s" % (sr(sC2 + 1), sr(sC)))
    A("s_mov_b32 %s, 0xffff0000" % sr(sMask)); A("s_mov_b32 %s, 0x%08x" % (sr(sLo), f2u(2.0 ** -32)))
    A("s_mov_b32 %s, 16384" % sr(sP16)); A("s_mov_b32 %s, 0" % sr(sO1))
    A("v_sub_u32 %s, 0, %s" % (vr(t + 3), vr(t))); A("v_and_b32 %s, 3, %s" % (vr(t + 3), vr(t + 3))); A("v_xor_b32 %s, %s, %s" % (vr(t + 3), vr(t + 1), vr(t + 3)))
    A("v_lshlrev_b32 %s, 10, %s" % (vr(vQA), vr(t)))
    A("v_lshl_add_u32 %s, %s, 6, %s" % (vr(vQA), vr(t + 2), vr(vQA)))
    A("v_lshl_add_u32 %s, %s, 4, %s" % (vr(vQA), vr(t + 3), vr(vQA)))
    A("v_add_u32 %s, %d, %s" % (vr(vKA), KRING, vr(vQA)))
    A("v_add_u32 %s, s47, %s" % (vr(vQA), vr(vQA)))
    A("v_sub_u32 %s, 0, %s" % (vr(t + 3), vr(t + 1))); A("v_and_b32 %s, 3, %s" % (vr(t + 3), vr(t + 3)))
    A("v_lshrrev_b32 %s, 1, %s" % (vr(t + 4), vr(t + 2))); A("v_xor_b32 %s, %s, %s" % (vr(t + 3), vr(t + 4), vr(t + 3)))
    A("v_lshlrev_b32 %s, 10, %s" % (vr(vVA0), vr(t + 1)))
    A("v_lshl_add_u32 %s, %s, 6, %s" % (vr(vVA0), vr(t), vr(vVA0)))
    A("v_lshl_add_u32 %s, %s, 4, %s" % (vr(vVA0), vr(t + 3), vr(vVA0)))
    A("v_and_b32 %s, 1, v0" % vr(t + 4)); A("v_lshl_add_u32 %s, %s, 3, %s" % (vr(vVA0), vr(t + 4), vr(vVA0)))
    A("v_add_u32 %s, %d, %s" % (vr(vVA0), VRING, vr(vVA0)))
    A("v_xor_b32 %s, 32, %s" % (vr(vVA1), vr(vVA0)))
    A("v_lshlrev_b32 %s, 4, v0" % vr(vLin)); A("v_add_u32 %s, s47, %s" % (vr(vLin), vr(vLin)))
    A("v_mov_b32 %s, %s" % (vr(vQW), vr(vLin)))
    A("v_and_b32 %s, 15, v0" % vr(t + 3))
    A("v_mul_u32_u24 %s, 272, %s" % (vr(vEW), vr(t + 3))); A("v_lshl_add_u32 %s, %s, 3, %s" % (vr(vEW), vr(t + 1), vr(vEW))); A("v_add_u32 %s, s47, %s" % (vr(vEW), vr(vEW)))
    A("v_mul_u32_u24 %s, 272, %s" % (vr(vER), vr(t + 1))); A("v_lshl_add_u32 %s, %s, 4, %s" % (vr(vER), vr(t + 3), vr(vER))); A("v_add_u32 %s, s47, %s" % (vr(vER), vr(vER)))
    A("v_cmp_gt_u32 vcc, 2, %s" % vr(t + 2)); A("v_mov_b32 %s, 0x3f803f80" % vr(t + 3)); A("v_mov_b32 %s, 0" % vr(vBad))
    for i in range(4): A("v_cndmask_b32 %s, 0, %s, vcc" % (vr(vONE + i), vr(t + 3)))
    A("v_cmp_eq_u32 vcc, 1, %s" % vr(t + 2)); A("v_mov_b32 %s, 0x44444444" % vr(vIDX)); A("v_mov_b32 %s, 0xeeeeeeee" % vr(t + 3))
    A("v_cndmask_b32 %s, %s, %s, vcc" % (vr(vIDX), vr(vIDX), vr(t + 3)))
    for i in range(16): A("v_mov_b32 %s, 0" % vr(vL + i))
    if O.stamps:
        A("s_lshl_b32 s42, s2, 2"); A("s_add_u32 s42, s42, %s" % sr(sWave)); A("s_lshl_b32 s57, s42, 9"); A("s_mov_b32 s56, 0")
        A("s_mov_b32 s54, 0x1000000"); A("s_mov_b32 s55, 0x20000")
    return L, L2

def prologue():
    su, su2 = setup()
    st = {'Q': 0, 'K': 0, 'V': 0}
    G = O.pro.split(',')
    L = su + [Env(lambda e: e.update(tile=0, ka=0, va0=0, va1=0, sM=0, sT=0))]
    L += pro_group(G[0], st)
    if O.prefetch:
        L += [I("s_getpc_b64 s[42:43]"), I("s_lshl_b32 s44, %s, 13" % sr(sWave)), I("v_lshlrev_b32 v1, 7, v0"), I("v_add_u32 v1, s44, v1"),
              I("global_load_dword v1, v1, s[42:43]")]
    L += su2 + stamp(0)
    L += [Wait(vm=w_dma('K', 0)), I("s_barrier")] + stamp(1)
    L += [k_read(i, 0) for i in range(16)]
    cb = conv_block(vO, vLin, 0, pk=True)
    L += cb[:1] + pro_group(G[1], st) + cb[1:]
    L += [q_read(0, ks) for ks in range(4)] + stamp(5)
    qk = [mfma_qk(0, a >> 2, a & 3) for a in range(16)]
    L += [Wait(lg=w_regs(ar(aQ, 4)))] + qk[:1] + [Wait(lg=w_regs(ar(aQ, 16)))] + qk[1:12]
    for a in range(12, 16): L += [exp(a - 12), qk[a]]
    for e in range(4, 12): L += [exp(e)] + ([cvtp(e - 3, 1)] if not e & 1 else [])
    L += [cvtp(9, 1), cvtp(11, 1)]
    cb = conv_block(vO + 32, vLin, 4096, pk=True)
    L += cb[:1] + pro_group(G[2], st) + cb[1:]
    L += [q_read(1, ks) for ks in range(4)] + stamp(6)
    L += [Wait(vm=w_dma('V', 0)), I("s_barrier")]
    L += pro_group(G[3], st)
    L += vlo_reads(0, 0) + vhi_reads(0, 0)
    L += [Wait(lg=w_regs(ar(aQ + 16, 16)))] + stamp(8)
    return L, st, G[4:]

def tile0(st, G):
    T = base_tile(0, czero=True)
    T.put(15, [Wait(lg=w_regs(ar(aVH, 96)))])
    c2 = conv_block(vO + 64, vLin, 8192) + [q_read(2, ks) for ks in range(4)]
    T.spread(c2, 1, NM - 4, front=False)
    T.put(NM - 1, [Wait(lg=w_regs(ar(aQ + 32, 16)))])
    g4 = pro_group(G[0], st)
    assert st == {'Q': 4, 'K': 3, 'V': 3}, st
    c3 = conv_block(vO + 96, vLin, 12288) + [q_read(3, ks) for ks in range(4)]
    c3 = c3[:1] + g4 + [I("s_mov_b32 %s, %d" % (sr(sT), 3 * 16384)), Env(lambda e: e.update(sT=3))] + c3[1:]
    T.spread(c3, NM + 1, 2 * NM - 4, front=False)
    T.put(2 * NM - 1, [Wait(lg=w_regs(ar(aQ + 48, 16)))])
    T.spread([delta_ops()[:1], delta_ops()[1:], adv(vVA0, 'va0'), adv(vVA1, 'va1'), adv(vKA, 'ka')], 2 * NM + 1, 2 * NM + 9, pack=True, front=False)
    T.put(2 * NM + 9, barrier(w_dma('K', 1)))
    T.spread([k_read(i, 1) for i in range(16)], 2 * NM + 11, 3 * NM - 4, mingap=lambda i: 2 * NM + i)
    T.put(3 * NM - 1, [Wait(lg=w_regs(ar(aK, 64)))])
    T.put(3 * NM + 5, [Wait(vm=w_dma('V', 1)), I("s_barrier")])
    T.spread(vhi_reads(1, 1)[:8], 3 * NM + 25, 4 * NM, pack=True)
    T.spread(vlo_reads(1, 1), 3 * NM + 7, 3 * NM + 24)
    T.put(4 * NM - 1, [Wait(lg=w_regs(ar(aVL, 64)))])
    T.spread(dma_seq(), 3 * NM + 7, 4 * NM - 1, front=False)
    T.put(3 * NM + 1, [I("s_mov_b32 %s, %d" % (sr(sEnd), (4 + 4) * 16384))])
    INFO.append(("T0", T.cycles()))
    return finish_tile(T)

def tile15():
    T = base_tile(1)
    steady(T, 1)
    for q in range(4):
        lo = 12 if q == 0 else (q - 1) * NM + 22
        T.spread([q_read(q, ks) for ks in range(4)], lo, lo + 8, front=False)
    return T

def switch_tiles():
    T15 = tile15()
    T16 = base_tile(0, czero=True); steady(T16, 0)
    T = TL(T15.a + T16.a); T.g = T15.g + T16.g; T.isexp = T15.isexp + T16.isexp
    T.g[4 * NM - 1].append([inc('tile')])
    lo = NM + 3; hi = 4 * NM + 3 * NM + 12
    w = (hi - lo) / 4.0
    prevS = []
    for q in range(4):
        Lq, Sq = epilogue(q, zero=True)
        a = max(int(lo + q * w), (q + 1) * NM + 7); b = min(int(lo + (q + 1) * w), 4 * NM + q * NM + 12)
        k = 14
        T.spread(Lq[:k] + prevS + Lq[k:], a, b, front=False)
        prevS = Sq
    T.spread(prevS, hi + 6, hi + 14, front=False)
    T.put(hi + 15, [I("s_mov_b32 %s, 131072" % sr(sO1))])
    T.put(hi + 15, [I("s_mov_b32 %s, %d" % (sr(sEnd), (30 + 4) * 16384))])
    T.put(T.n - 1, [I("s_branch LOOPP")])
    INFO.append(("T15+16", T.cycles()))
    return finish_tile(T)

def tile31():
    T = base_tile(1, last=True)
    steady(T, 1, nxt=False)
    prevS = []
    for q in range(3):
        Lq, Sq = epilogue(q)
        a = (q + 1) * NM + 7; b = min((q + 2) * NM + 7, T.n)
        k = 14
        T.spread(Lq[:k] + prevS + Lq[k:], a, b, front=False)
        prevS = Sq
    INFO.append(("T31", T.cycles()))
    Lq, Sq = epilogue(3, pk=True)
    L = finish_tile(T) + Lq[:4] + prevS + Lq[4:]
    chk = [I("v_cmp_lt_u32 vcc, 0x20000000, %s" % vr(vBad))]
    return L + chk + Sq

def fallback():
    vM = vR
    pre = [I("FALLBACK:"), I("s_waitcnt vmcnt(0) lgkmcnt(0)"), I("s_lshl_b32 s46, %s, 12" % sr(sWave)), I("s_lshl_b32 s47, %s, 14" % sr(sWave))]
    pre += [I("v_subrev_u32 %s, s46, %s" % (vr(vDM + j), vr(vDM + j))) for j in range(4)]
    for r in (vVA0, vVA1):
        pre += [I("v_and_b32 %s, 0x3fff, %s" % (vr(r), vr(r))), I("v_add_u32 %s, s47, %s" % (vr(r), vr(r)))]
    pre += [I("s_mov_b32 %s, 0" % sr(sO1)), I("s_mov_b32 %s, 0" % sr(sEnd))]
    def stage(srd, soff):
        L = []
        for x in range(4):
            L += [I("s_add_u32 m0, s47, %d" % (x * 4096)), I("s_add_u32 s44, %s, %d" % (soff, x * 4096))]
            L += [I("buffer_load_dwordx4 %s, %s, s44 offen offset:%d lds" % (vr(vDM + j), sr(srd, 4), j * 1024)) for j in range(4)]
        return L + [I("s_waitcnt vmcnt(0)")]
    def kreads():
        L = []
        for i in range(16):
            L.append(k_read(i, 0, addr=vQA, chk=False))
            if i & 7 == 7: L.append(I("s_waitcnt lgkmcnt(0)"))
        return L
    blk = [I("FB_BLK:"), I("s_add_u32 s45, %s, s47" % sr(sO1))] + stage(S_Q, "s45")
    for q in range(4):
        blk += [q_read(q, ks) for ks in range(4)] + [I("s_waitcnt lgkmcnt(0)")]
    blk += [I("v_mov_b32 %s, 0xff800000" % vr(vM + q)) for q in range(4)]
    blk += [I("s_mov_b32 %s, %s" % (sr(sT), sr(sEnd))), I("s_add_u32 %s, %s, 262144" % (sr(sEnd), sr(sEnd)))]
    p1 = [I("FB_P1:")] + stage(S_K, sr(sT)) + kreads()
    for q in range(4):
        p1 += [mfma_qk(q, a >> 2, a & 3) for a in range(16)] + [I("s_nop 7")]
        p1 += [I("v_max3_f32 %s, %s, %s, %s" % (vr(vM + q), vr(vM + q), vr(vS + 2 * i), vr(vS + 2 * i + 1))) for i in range(8)]
        p1 += [I("s_nop 1")]
    p1 += [I("s_add_u32 %s, %s, 16384" % (sr(sT), sr(sT))), I("s_cmp_lt_u32 %s, %s" % (sr(sT), sr(sEnd))), I("s_cbranch_scc1 FB_P1")]
    mid = []
    for q in range(4):
        for op in ("v_permlane32_swap_b32", "v_permlane16_swap_b32"):
            mid += [I("v_mov_b32 %s, %s" % (vr(vT), vr(vM + q))), I("s_nop 1"), I("%s %s, %s" % (op, vr(vT), vr(vM + q))), I("s_nop 1"),
                    I("v_max_f32 %s, %s, %s" % (vr(vM + q), vr(vT), vr(vM + q)))]
    mid += [I("v_mov_b32 %s, 0" % vr(vO + i)) for i in range(128)] + [I("v_mov_b32 %s, 0" % vr(vL + i)) for i in range(16)]
    mid += [I("s_sub_u32 %s, %s, 262144" % (sr(sT), sr(sT)))]
    p2 = [I("FB_P2:")] + stage(S_K, sr(sT)) + kreads() + stage(S_V, sr(sT))
    n = 0
    for db in range(8):
        for h in range(2):
            for u in range(2):
                p2.append(v_read(db, h, u, 0, 0, chk=False)); n += 1
                if n % 8 == 0: p2.append(I("s_waitcnt lgkmcnt(0)"))
    for q in range(4):
        p2 += [mfma_qk(q, a >> 2, a & 3) for a in range(16)] + [I("s_nop 7")]
        for e in range(16):
            p2 += [I("v_sub_f32 %s, %s, %s" % (vr(vS + e), vr(vS + e), vr(vM + q))), I("v_mul_f32 %s, %s, %s" % (vr(vS + e), sr(sC), vr(vS + e))), exp(e)]
        p2 += [I("s_nop 0")] + [cvtp(e, 0) for e in range(1, 16, 2)] + [I("s_nop 1")]
        p2 += [mfma_pv(q, a >> 1, a & 1, 0, 0) for a in range(16)] + [mfma_l(q, 0)]
    p2 += [I("s_add_u32 %s, %s, 16384" % (sr(sT), sr(sT))), I("s_cmp_lt_u32 %s, %s" % (sr(sT), sr(sEnd))), I("s_cbranch_scc1 FB_P2")]
    fin = [I("s_nop 7")]
    for q in range(4):
        Lq, Sq = epilogue(q, check=False)
        fin += Lq + Sq
    fin += [I("s_mov_b32 %s, 131072" % sr(sO1)), I("s_cmp_lt_u32 %s, 524288" % sr(sEnd)), I("s_cbranch_scc1 FB_BLK"), I("s_endpgm")]
    return pre, blk, p1, mid, p2, fin

def resolve(trace):
    vmq = []; lgq = []; env = {}
    from asmlib import parse_wait
    for x in trace:
        if x.kind == 'env': x.fn(env); continue
        if x.kind == 'label': continue
        if x.kind == 'autowait':
            for q, pred, attr, mx in ((vmq, x.vm, 'nvm', 63), (lgq, x.lg, 'nlg', 15)):
                if pred is None: continue
                idx = [i for i, (p, tag) in enumerate(q) if pred(p, tag, env)]
                if not idx: continue
                n = min(len(q) - 1 - idx[-1], mx)
                if attr == 'nlg' and any(p.kind == 'smem' for p, _ in q): n = 0
                cur = getattr(x, attr)
                setattr(x, attr, n if cur is None else min(cur, n))
                del q[:len(q) - n]
            continue
        meta = x.meta(env) if callable(x.meta) else x.meta
        if x.kind in VMEMK: vmq.append((x, meta))
        elif x.kind in ('dsr', 'dsw', 'smem'): lgq.append((x, meta))
        elif x.kind == 'wait':
            vm, lg = parse_wait(x.text)
            if vm is not None and len(vmq) > vm: del vmq[:len(vmq) - vm]
            if lg is not None and len(lgq) > lg: del lgq[:len(lgq) - lg]
    for x in trace:
        if x.kind == 'autowait' and x.inst is None and (x.nvm is not None or x.nlg is not None):
            t = "s_waitcnt" + (" vmcnt(%d)" % x.nvm if x.nvm is not None else "") + (" lgkmcnt(%d)" % x.nlg if x.nlg is not None else "")
            x.inst = I(t)
def lower(L):
    out = []
    for x in L:
        if x.kind == 'autowait':
            if x.inst is not None: out.append(x.inst)
        else: out.append(x)
    return out

def build():
    pro, st, G = prologue()
    t0 = tile0(st, G)
    lp = [I("LOOPP:")] + tile_plain(1, name="P1") + tile_plain(0, endx=[I("s_cmp_lg_u32 %s, %s" % (sr(sT), sr(sEnd))), I("s_cbranch_scc1 LOOPP")], name="P0")
    d1 = [I("s_cmp_eq_u32 %s, %d" % (sr(sEnd), 8 * 16384)), I("s_cbranch_scc1 STUB")]
    d2 = [I("s_cmp_eq_u32 %s, %d" % (sr(sEnd), 34 * 16384)), I("s_cbranch_scc1 T31")]
    def after(j): return [q_load(vR, j, sr(sQ1))]
    cb = conv_block(vR, vQW, 0, after=after)
    half = len(cb) // 2
    qpre = [I("s_add_u32 %s, %s, 4096" % (sr(sQ1), sr(sQ1)))]
    qpost = [I("v_add_u32 %s, 4096, %s" % (vr(vQW), vr(vQW)))]
    lq = [I("LOOPQ:")] + tile_plain(1, extra=qpre + cb[:half], name="Q1") + \
        tile_plain(0, extra=cb[half:] + qpost, endx=[I("s_cmp_lg_u32 %s, %d" % (sr(sT), 18 * 16384)), I("s_cbranch_scc1 LOOPQ")], name="Q0")
    sw = stamp(9) + switch_tiles()
    t31 = [I("T31:")] + stamp(12) + tile31()
    fin = []
    if O.stamps:
        fin = stamp(13) + [I("s_waitcnt vmcnt(0)")] + stamp(2) + [I("s_memrealtime s[58:59]"), I("s_waitcnt lgkmcnt(0)"), I("v_writelane_b32 %s, s58, 7" % vr(vSt)),
              I("v_lshlrev_b32 v1, 2, v0"), I("buffer_store_dword %s, v1, s[52:55], s57 offen" % vr(vSt)), I("buffer_store_dword %s, v1, s[52:55], s57 offen offset:256" % vr(vSt + 1))]
    if not (O.drop or O.nofb): fin += [I("s_cbranch_vccnz FALLBACK")]
    end = [I("END:"), I("s_endpgm")]
    stub = [I("STUB:"), I("s_add_u32 %s, %s, %d" % (sr(sQ1), sr(sQ1), 131072 - 16384))] + [q_load(vR, j, sr(sQ1)) for j in range(4)] + \
        [I("s_mov_b32 %s, %d" % (sr(sEnd), 10 * 16384)), I("s_branch LOOPP")]
    fb = fallback()
    static = pro + t0 + lp + d1 + d2 + lq + sw + t31 + fin + end + stub
    for x in fb: static += x
    T = pro + t0 + lp * 2 + d1 + stub + lp + d1 + d2 + lq * 4 + sw + lp * 7 + d1 + d2 + t31 + fin
    pre, blk, p1, mid, p2, ffin = fb
    T += pre + (blk + p1 * 2 + mid + p2 * 2 + ffin) * 2
    resolve(T)
    env = {}
    errs = check_trace(lower(T), env) + check_scc(lower(T))
    assert env['tile'] == 32 and env['sT'] == 34, env
    return lower(static), errs

HEADER = open('standalone__gqa_softmax__near_ridge.s.ref').read().split('; Override')[0]

def emit(static):
    out = [HEADER.rstrip('\n')]
    out.append("; @launch grid=(256,1,1) block=(256,1,1) lds=163840")
    out.append('.amdgcn_target "amdgcn-amd-amdhsa--gfx950"\n.text\n.globl %s\n.p2align 8\n.type %s,@function\n%s:' % (NAME, NAME, NAME))
    for x in static:
        if x.kind == 'env': continue
        out.append(x.text if x.kind == 'label' else "    " + x.text)
    out.append('.section .rodata,"a"\n.p2align 6\n.amdhsa_kernel %s\n  .amdhsa_next_free_vgpr 512\n  .amdhsa_next_free_sgpr 102\n  .amdhsa_accum_offset 256\n  .amdhsa_group_segment_fixed_size 0\n  .amdhsa_kernarg_size 48\n  .amdhsa_user_sgpr_count 2\n  .amdhsa_user_sgpr_kernarg_segment_ptr 1\n  .amdhsa_system_sgpr_workgroup_id_x 1\n.end_amdhsa_kernel' % NAME)
    return "\n".join(out) + "\n"

if __name__ == "__main__":
    outp = sys.argv[1]
    for a in sys.argv[2:]:
        k, v = a.split('=')
        cur = getattr(O, k)
        setattr(O, k, (v not in ('0', 'False')) if isinstance(cur, bool) else type(cur)(v))
    static, errs = build()
    seen = set()
    for e in errs:
        if e not in seen:
            seen.add(e)
            if not O.drop: print(e)
    print("errors:", len(errs), "unique", len(seen), INFO)
    open(outp, 'w').write(emit(static))
    import subprocess
    r = subprocess.run(["clang", "-x", "assembler", "-target", "amdgcn-amd-amdhsa", "-mcpu=gfx950", "-c", outp, "-o", "gen_test.o"], capture_output=True, text=True)
    print(r.stderr[:3000] if r.returncode else "assembled ok")
    r = subprocess.run("llvm-size gen_test.o", shell=True, capture_output=True, text=True); print(r.stdout)
```

```python
import sys, struct, math
from asmlib import Inst, Env, check_trace, parse_regs, VMEMK

NAME = "standalone__gqa_softmax__near_ridge_kernel"
def f2u(x): return struct.unpack('<I', struct.pack('<f', x))[0]

class Opt:
    stamps = False
    kv_mod = ""
    q_mod = ""
    store_mod = ""
    drop = ""
    prefetch = False
    bar = 21
    dma_lo = 25; dma_hi = 66
    vlo_lo = 33; vlo_hi = 66
    k_lo = 67; k_hi = 92
    pro = "KQQ,VQ,QK,V,KV"
    nofb = False
    map = 0
    dbg = False
O = Opt()

S_Q, S_K, S_V, S_O = 12, 16, 20, 24
sC, sT, sM, sM2, sD, sEnd, sMask, sLo, sQ1, sO1, sP16, sWave = range(28, 40)
sC2 = 40
sTmp = 42
sStamp = 48
S_WS = 52

vKA, vVA0, vVA1, vQA, vLin, vEW, vER, vBad = range(2, 10)
vDM = 10
vIDX = 14
vQW = 15
vONE = 16
vS = 20
vP = 36
vL = 52
vR = 68
vE = 84
vF = 100
vT = 116
vSt = 126
vO = 128
aQ, aK, aVH, aVL = 0, 64, 128, 160
KRING, VRING = 65536, 114688
NM = 33

def vr(b, n=1): return "v%d" % b if n == 1 else "v[%d:%d]" % (b, b + n - 1)
def ar(b, n=1): return "a%d" % b if n == 1 else "a[%d:%d]" % (b, b + n - 1)
def sr(b, n=1): return "s%d" % b if n == 1 else "s[%d:%d]" % (b, b + n - 1)
I = Inst
def regs(s): return set(parse_regs(s))

class Wait:
    kind = 'autowait'; op = 's_waitcnt'
    def __init__(self, vm=None, lg=None):
        self.vm = vm; self.lg = lg; self.nvm = None; self.nlg = None; self.inst = None
    @property
    def text(self): return self.inst.text if self.inst else None
def w_regs(s):
    r = regs(s)
    return lambda p, tag, e: bool(p.wr & r)
def w_dma(which, dt):
    return lambda p, tag, e: p.kind == 'dma' and tag is not None and tag[0][0] in which and tag[1] <= e['tile'] + dt
def w_all(p, tag, e): return True

def vfrag(db, h, par):
    return (aVL + 32 * par + 8 * db + 4 * h) if db < 4 else (aVH + 8 * (db - 4) + 4 * h)
def mfma_qk(q, y, ks):
    D = vr(vS + 4 * y, 4)
    return I("v_mfma_f32_16x16x32_bf16 %s, %s, %s, %s" % (D, ar(aK + 16 * y + 4 * ks, 4), ar(aQ + 16 * q + 4 * ks, 4), "0" if ks == 0 else D))
def mfma_pv(q, db, h, par, pb, czero=False):
    D = vr(vO + 32 * q + 4 * db, 4)
    return I("v_mfma_f32_16x16x32_bf16 %s, %s, %s, %s" % (D, ar(vfrag(db, h, par), 4), vr(vP + 8 * pb + 4 * h, 4), "0" if czero else D))
def mfma_l(q, pb):
    return I("v_smfmac_f32_16x16x64_bf16 %s, %s, %s, %s" % (vr(vL + 4 * q, 4), vr(vONE, 4), vr(vP + 8 * pb, 8), vr(vIDX)))
def exp(e): return I("v_exp_f32 %s, %s" % (vr(vS + e), vr(vS + e)))
def cvtp(e, pb): return I("v_cvt_pk_bf16_f32 %s, %s, %s" % (vr(vP + 8 * pb + e // 2), vr(vS + e - 1), vr(vS + e)))

def k_read(i, dt, addr=vKA, chk=True):
    y, ks = i >> 2, i & 3
    return I("ds_read_b128 %s, %s offset:%d" % (ar(aK + 4 * i, 4), vr(addr), ks * 256 + y * 4096),
             meta=(lambda e: (('K', e['ka']), e['tile'] + dt)) if chk else None)
def v_read(db, h, u, par, dt, chk=True):
    y = 2 * h + u
    return I("ds_read_b64_tr_b16 %s, %s offset:%d" % (ar(vfrag(db, h, par) + 2 * u, 2), vr(vVA0 + (db & 1)), (db >> 1) * 256 + y * 4096),
             meta=(lambda e: (('V', e['va%d' % (db & 1)]), e['tile'] + dt)) if chk else None)
def q_read(q, ks):
    return I("ds_read_b128 %s, %s offset:%d" % (ar(aQ + 16 * q + 4 * ks, 4), vr(vQA), ks * 256 + q * 4096))
def dma(which, j):
    srd = S_K if which == 'K' else S_V
    return I("buffer_load_dwordx4 %s, %s, %s offen offset:%d %slds" % (vr(vDM + j), sr(srd, 4), sr(sT), j * 1024, O.kv_mod),
             meta=lambda e: (e['m0'], e['sT'], True))
def set_m0(which):
    if which == 'K': i = I("s_mov_b32 m0, %s" % sr(sM))
    else: i = I("s_add_u32 m0, %s, %d" % (sr(sM), VRING - KRING))
    return [i, Env(lambda e: e.__setitem__('m0', (which, e['sM'])))]
def inc(key, mod=None):
    return Env(lambda e: e.__setitem__(key, (e[key] + 1) % mod if mod else e[key] + 1))
def delta_ops():
    return [I("s_cmp_eq_u32 %s, %s" % (sr(sM), sr(sM2))), I("s_cselect_b32 %s, 0xffff8000, %s" % (sr(sD), sr(sP16))),
            Env(lambda e: e.__setitem__('dfrom', e['sM']))]
def adv(reg, key):
    def f(e):
        assert e[key] == e['dfrom'], (key, e)
        e[key] = (e[key] + 1) % 3
    if key == 'sM': return [I("s_add_u32 %s, %s, %s" % (sr(sM), sr(sM), sr(sD))), Env(f)]
    return [I("v_add_u32 %s, %s, %s" % (vr(reg), sr(sD), vr(reg))), Env(f)]
def dma_seq():
    U = []
    for w in 'KV':
        U.append(set_m0(w))
        for j in range(4): U.append([dma(w, j)])
    U.append([I("s_add_u32 %s, %s, 16384" % (sr(sT), sr(sT))), inc('sT')])
    U.append(adv(None, 'sM'))
    return U

def q_load(dst, j, soff):
    return I("buffer_load_dwordx4 %s, %s, %s, %s offen offset:%d%s" % (vr(dst + 4 * j, 4), vr(vDM + j), sr(S_Q, 4), soff, j * 1024, O.q_mod))
def conv(r, k, pk=False):
    t = vT + 2 * (k & 1)
    L = [I("v_lshlrev_b32 %s, 16, %s" % (vr(t), vr(r))), I("v_and_b32 %s, %s, %s" % (vr(t + 1), sr(sMask), vr(r)))]
    if pk: L.append(I("v_pk_mul_f32 %s, %s, %s" % (vr(t, 2), vr(t, 2), sr(sC2, 2))))
    else: L += [I("v_mul_f32 %s, %s, %s" % (vr(t), sr(sC), vr(t))), I("v_mul_f32 %s, %s, %s" % (vr(t + 1), sr(sC), vr(t + 1)))]
    L.append(I("v_cvt_pk_bf16_f32 %s, %s, %s" % (vr(r), vr(t), vr(t + 1))))
    return L
def conv_block(src, addr, off, pk=False, after=None):
    L = []
    for j in range(4):
        L.append(Wait(vm=w_regs(vr(src + 4 * j, 4))))
        for i in range(4): L += conv(src + 4 * j + i, i, pk)
        L.append(I("ds_write_b128 %s, %s offset:%d" % (vr(addr), vr(src + 4 * j, 4), off + j * 1024)))
        if after: L += after(j)
    return L

def epilogue(q, check=True, zero=False, pk=False):
    t = vT + 4
    L = [I("v_add_f32 %s, %s, %s" % (vr(t), vr(vL + 4 * q), vr(vL + 4 * q + 1))), I("v_rcp_f32 %s, %s" % (vr(t + 2), vr(t)))]
    if check: L += [I("v_subrev_u32 %s, %s, %s" % (vr(t), sr(sLo), vr(t))), I("v_max_u32 %s, %s, %s" % (vr(vBad), vr(vBad), vr(t)))]
    else: L += [I("s_nop 0")]
    if zero: L += [I("v_mov_b32 %s, 0" % vr(vL + 4 * q)), I("v_mov_b32 %s, 0" % vr(vL + 4 * q + 1))]
    for db in range(8):
        o = vO + 32 * q + 4 * db
        if pk:
            for i in (0, 2): L.append(I("v_pk_mul_f32 %s, %s, %s op_sel_hi:[1,0]" % (vr(o + i, 2), vr(o + i, 2), vr(t + 2, 2))))
        else:
            for i in range(4): L.append(I("v_mul_f32 %s, %s, %s" % (vr(o + i), vr(t + 2), vr(o + i))))
        for i in range(2): L.append(I("v_cvt_pk_bf16_f32 %s, %s, %s" % (vr(vE + 2 * db + i), vr(o + 2 * i), vr(o + 2 * i + 1))))
        L.append(I("ds_write_b64 %s, %s offset:%d" % (vr(vEW), vr(vE + 2 * db, 2), 32 * db)))
    for j in range(4): L.append(I("ds_read_b128 %s, %s offset:%d" % (vr(vF + 4 * j, 4), vr(vER), j * 1088)))
    S = []
    for j in range(4):
        S.append(Wait(lg=w_regs(vr(vF + 4 * j, 4))))
        S.append(I("buffer_store_dwordx4 %s, %s, %s, %s offen offset:%d%s" % (vr(vF + 4 * j, 4), vr(vLin), sr(S_O, 4), sr(sO1), j * 1024, O.store_mod)))
    S.append(I("s_add_u32 %s, %s, 4096" % (sr(sO1), sr(sO1))))
    return L, S

def cost(x):
    if x.kind in ('env', 'label'): return 0
    if x.kind == 'trans': return 8
    return 4
MEMK = ('dsr', 'dsw', 'dma', 'vld', 'vst')

class TL:
    def __init__(self, anchors):
        self.a = anchors; self.n = len(anchors)
        self.g = [[] for _ in anchors]
        self.isexp = [False] * self.n
    def used(self, g): return sum(cost(x) for u in self.g[g] for x in u)
    def put(self, g, u, front=False):
        if not isinstance(u, list): u = [u]
        if front: self.g[g].insert(0, u)
        else: self.g[g].append(u)
        if any(x.kind == 'trans' for x in u): self.isexp[g] = True
    def spread(self, units, lo, hi, mingap=None, front=True, pack=False):
        units = [u if isinstance(u, list) else [u] for u in units]
        need = sum(cost(x) for u in units for x in u)
        cand = [g for g in range(lo, hi) if not self.isexp[g]]
        cap = {g: max(0, 8 - self.used(g)) for g in cand}
        tot = sum(cap.values())
        k = 0
        while tot < need:
            deficit = (need - tot + 3) // 4
            if deficit >= len(cand):
                for g in cand: cap[g] += 4
                tot += 4 * len(cand)
            else:
                for i in range(deficit): cap[cand[int((i + 0.5) * len(cand) / deficit)]] += 4
                tot += 4 * deficit
        slots = []
        for g in cand: slots += [g] * (cap[g] // 4)
        ns = need // 4
        pos = 0; ins = {}
        last = lo
        for idx, u in enumerate(units):
            c = sum(cost(x) for x in u) // 4
            si = pos if pack else int(pos * len(slots) / max(ns, 1))
            g = slots[min(si, len(slots) - 1)]
            if mingap and g < mingap(idx):
                g = min(x for x in cand if x >= mingap(idx))
            g = max(g, last); last = g
            ins.setdefault(g, []).append(u)
            pos += c
        for g, us in ins.items():
            if front: self.g[g] = us + self.g[g]
            else: self.g[g] += us
    def flat(self):
        out = []
        for g in range(self.n):
            if self.a[g] is not None: out.append(self.a[g])
            for u in self.g[g]: out += u
        return out
    def cycles(self):
        return sum(max(16 if self.a[g] is not None else 0, (8 if self.a[g] is not None else 0) + self.used(g)) for g in range(self.n))

def stamp_ops(kind):
    if not O.stamps: return []
    if kind == 'pre': return [I("s_memtime s[48:49]")]
    return [I("s_memtime s[50:51]"), I("s_waitcnt lgkmcnt(0)"), I("s_mov_b32 m0, s56"), I("s_add_u32 s56, s56, 1"), I("v_writelane_b32 %s, s48, m0" % vr(vSt + 1)),
            I("s_add_u32 m0, m0, 32"), I("s_nop 0"), I("v_writelane_b32 %s, s50, m0" % vr(vSt + 1))]
def stamp(idx):
    if not O.stamps: return []
    return [I("s_memtime %s" % sr(sStamp, 2)), I("s_waitcnt lgkmcnt(0)"), I("v_writelane_b32 %s, %s, %d" % (vr(vSt), sr(sStamp), idx))]

def base_tile(par, czero=False, last=False):
    A = []
    for p in range(4):
        if last and p == 3:
            A += [mfma_pv(p, db, 0, par, 1 - (p & 1)) for db in range(8)]
            A += [mfma_l(p, 1 - (p & 1))]
            A += [mfma_pv(p, db, 1, par, 1 - (p & 1)) for db in range(8)]
            continue
        for a in range(16): A.append(mfma_qk((p + 1) & 3, a >> 2, a & 3))
        for a in range(16): A.append(mfma_pv(p, a >> 1, a & 1, par, 1 - (p & 1), czero and not (a & 1)))
        A.append(mfma_l(p, 1 - (p & 1)))
    T = TL(A)
    for p in range(-1, 4):
        if last and p == 3: continue
        for e in range(16):
            g = NM * p + 8 + 2 * e + (1 if e >= 12 else 0)
            if last and p == 2 and e >= 12: g = NM * 3 + (e - 12) + (e - 12) // 2
            if 0 <= g < T.n:
                T.put(g, exp(e))
                if e & 1: T.put(g + 1, cvtp(e, p & 1))
    return T

def vhi_reads(par_next, dt):
    return [v_read(db, h, u, par_next, dt) for db in range(4, 8) for h in range(2) for u in range(2)]
def vlo_reads(par_next, dt):
    return [v_read(db, h, u, par_next, dt) for db in range(4) for h in range(2) for u in range(2)]

def barrier(vm, lg=None):
    return stamp_ops('pre') + [Wait(vm=vm, lg=(w_all if O.stamps else lg)), I("s_barrier")] + stamp_ops('post')

def steady(T, par, carry=True, nxt=True):
    if carry:
        T.spread(vhi_reads(par, 0)[8:], 0, 12, pack=True)
    if not nxt:
        T.put(21, [Wait(lg=w_regs(ar(aVH, 32)))])
        return
    bar = O.bar
    if bar > 23: T.put(21, [Wait(lg=w_regs(ar(aVH, 32)))])
    T.put(bar, barrier(w_dma('KV', 1), w_regs(ar(aVH, 32))))
    T.spread([delta_ops()[:1], delta_ops()[1:], adv(vVA0, 'va0'), adv(vVA1, 'va1'), adv(vKA, 'ka')], 13, 21, pack=True, front=False)
    T.spread(vhi_reads(1 - par, 1)[:8], 3 * NM + 25, 4 * NM, pack=True)
    T.spread([k_read(i, 1) for i in range(16)], O.k_lo, O.k_hi, mingap=lambda i: 2 * NM + i)
    T.put(3 * NM - 1, [Wait(lg=w_regs(ar(aK, 64)))])
    T.spread(vlo_reads(1 - par, 1), O.vlo_lo, O.vlo_hi)
    if O.vlo_hi > O.k_hi: T.put(4 * NM - 1, [Wait(lg=w_regs(ar(aVL, 64)))])
    T.spread(dma_seq(), O.dma_lo, O.dma_hi)

def fix_m0(L):
    i = 0
    while i < len(L):
        x = L[i]
        if x.kind == 'salu' and ('s', 'm0') in x.wr:
            j = i + 1
            while L[j].kind == 'env': j += 1
            if L[j].kind == 'dma':
                k = i - 1
                while L[k].kind == 'env': k -= 1
                assert L[k].kind in ('mfma', 'valu', 'trans', 'dsr'), L[k].text
                L[k:j] = L[i:j] + L[k:i]
        i += 1
    return L

def check_scc(T):
    last = None; errs = []
    for x in T:
        if x.kind in ('env', 'label'): continue
        op = x.op
        if op.startswith('s_cselect') or op.startswith('s_cbranch_scc'):
            if not last.startswith('s_cmp'): errs.append("SCC: %s after %s" % (x.text, last))
        if op.startswith('s_addc') and not last.startswith('s_add_u32'): errs.append("SCC addc " + x.text)
        if x.kind == 'salu' and not (op.startswith('s_mov') or op.startswith('s_cselect') or op.startswith('s_mul') or op.startswith('s_getpc')): last = x.text
    return errs

def finish_tile(T):
    L = fix_m0(T.flat())
    if O.drop:
        dl = O.drop.split(',')
        def keep(x):
            if 'dma' in dl and x.kind == 'dma': return False
            if 'k' in dl and x.op == 'ds_read_b128': return False
            if 'v' in dl and x.op == 'ds_read_b64_tr_b16': return False
            if 'bar' in dl and x.kind == 'barrier': return False
            return True
        L = [x for x in L if x.kind in ('env', 'label') or keep(x)]
    return L + [inc('tile')]

INFO = []
def tile_plain(par, endx=None, extra=None, name=""):
    T = base_tile(par)
    steady(T, par)
    if endx: T.put(T.n - 4, endx[:1]); T.put(T.n - 1, endx[1:])
    if extra: T.spread(extra, 0, T.n - 1, front=False)
    INFO.append((name, T.cycles()))
    return finish_tile(T)

def pro_group(spec, st):
    L = []
    for c in spec:
        if c == 'Q':
            q = st['Q']; st['Q'] += 1
            L += [q_load(vO + 32 * q, j, sr(sQ1)) for j in range(4)]
            L.append(I("s_add_u32 %s, %s, 4096" % (sr(sQ1), sr(sQ1))))
        else:
            t = st[c]; st[c] += 1
            base = t * 16384 + (VRING - KRING if c == 'V' else 0)
            L += [I("s_add_u32 m0, %s, %d" % (sr(sM), base)), I("s_mov_b32 %s, %d" % (sr(sT), t * 16384)),
                  Env(lambda e, c=c, t=t: e.update(m0=(c, t), sT=t))]
            L += [dma(c, j) for j in range(4)]
    return L

def setup():
    L = []
    A = lambda t: L.append(I(t))
    A("s_cmp_ge_u32 s2, 256"); A("s_cbranch_scc1 END")
    if O.stamps:
        A("s_memrealtime s[58:59]"); A("s_waitcnt lgkmcnt(0)"); A("v_writelane_b32 %s, s58, 4" % vr(vSt))
    L += stamp(3)
    A("s_load_dwordx4 s[4:7], s[0:1], 0"); A("s_load_dwordx4 s[8:11], s[0:1], 16")
    if O.stamps: A("s_load_dwordx2 s[52:53], s[0:1], 40")
    A("v_lshrrev_b32 v1, 6, v0"); A("v_and_b32 v0, 63, v0")
    A("v_readfirstlane_b32 %s, v1" % sr(sWave))
    if O.map == 0:
        A("s_lshr_b32 s42, s2, 4"); A("s_lshl_b32 s42, s42, 3"); A("s_and_b32 s43, s2, 7"); A("s_add_u32 s42, s42, s43")
        A("s_lshr_b32 s43, s2, 3"); A("s_and_b32 s43, s43, 1")
    else:
        A("s_lshr_b32 s42, s2, 1"); A("s_and_b32 s43, s2, 1")
    A("s_lshl_b32 s44, s42, 19")
    A("s_lshl_b32 s45, s42, 18"); A("s_lshl_b32 s43, s43, 16"); A("s_add_u32 s45, s45, s43")
    A("s_lshl_b32 s46, %s, 12" % sr(sWave))
    A("s_add_u32 %s, s46, %d" % (sr(sM), KRING))
    A("s_mul_i32 %s, %s, 12288" % (sr(sQ1), sr(sWave)))
    t = vT
    A("v_bfe_u32 %s, v0, 2, 2" % vr(t))
    A("v_lshrrev_b32 %s, 4, v0" % vr(t + 1))
    A("v_and_b32 %s, 3, v0" % vr(t + 2))
    A("v_lshlrev_b32 %s, 8, %s" % (vr(vDM), vr(t)))
    A("v_lshl_add_u32 %s, %s, 6, %s" % (vr(vDM), vr(t + 1), vr(vDM)))
    A("v_lshl_add_u32 %s, %s, 4, %s" % (vr(vDM), vr(t + 2), vr(vDM)))
    A("v_add_u32 %s, s46, %s" % (vr(vDM), vr(vDM)))
    for j in range(1, 4): A("v_xor_b32 %s, %d, %s" % (vr(vDM + j), ((4 - j) & 3) * 16, vr(vDM)))
    A("s_lshl_b32 s47, %s, 14" % sr(sWave))
    for srd, n in ((S_Q, 196608), (S_K, 524288), (S_V, 524288), (S_O, 196608)):
        if srd == S_Q: A("s_add_u32 %s, s47, %d" % (sr(srd + 2), 131072 + 16384))
        else: A("s_mov_b32 %s, %d" % (sr(srd + 2), n))
        A("s_mov_b32 %s, 0x20000" % sr(srd + 3))
    A("s_waitcnt lgkmcnt(0)")
    for (srd, p, off) in ((S_K, 6, 44), (S_Q, 4, 45), (S_V, 8, 44), (S_O, 10, 45)):
        A("s_add_u32 %s, s%d, s%d" % (sr(srd), p, off)); A("s_addc_u32 %s, s%d, 0" % (sr(srd + 1), p + 1))
    L2 = []
    A = lambda t: L2.append(I(t))
    A("s_add_u32 %s, %s, 32768" % (sr(sM2), sr(sM)))
    A("s_mov_b32 %s, 0x%08x" % (sr(sC), f2u(128 ** -0.5 * math.log2(math.e))))
    A("s_mov_b32 %s, %s" % (sr(sC2), sr(sC))); A("s_mov_b32 %s, %s" % (sr(sC2 + 1), sr(sC)))
    A("s_mov_b32 %s, 0xffff0000" % sr(sMask)); A("s_mov_b32 %s, 0x%08x" % (sr(sLo), f2u(2.0 ** -32)))
    A("s_mov_b32 %s, 16384" % sr(sP16)); A("s_mov_b32 %s, 0" % sr(sO1))
    A("v_sub_u32 %s, 0, %s" % (vr(t + 3), vr(t))); A("v_and_b32 %s, 3, %s" % (vr(t + 3), vr(t + 3))); A("v_xor_b32 %s, %s, %s" % (vr(t + 3), vr(t + 1), vr(t + 3)))
    A("v_lshlrev_b32 %s, 10, %s" % (vr(vQA), vr(t)))
    A("v_lshl_add_u32 %s, %s, 6, %s" % (vr(vQA), vr(t + 2), vr(vQA)))
    A("v_lshl_add_u32 %s, %s, 4, %s" % (vr(vQA), vr(t + 3), vr(vQA)))
    A("v_add_u32 %s, %d, %s" % (vr(vKA), KRING, vr(vQA)))
    A("v_add_u32 %s, s47, %s" % (vr(vQA), vr(vQA)))
    A("v_sub_u32 %s, 0, %s" % (vr(t + 3), vr(t + 1))); A("v_and_b32 %s, 3, %s" % (vr(t + 3), vr(t + 3)))
    A("v_lshrrev_b32 %s, 1, %s" % (vr(t + 4), vr(t + 2))); A("v_xor_b32 %s, %s, %s" % (vr(t + 3), vr(t + 4), vr(t + 3)))
    A("v_lshlrev_b32 %s, 10, %s" % (vr(vVA0), vr(t + 1)))
    A("v_lshl_add_u32 %s, %s, 6, %s" % (vr(vVA0), vr(t), vr(vVA0)))
    A("v_lshl_add_u32 %s, %s, 4, %s" % (vr(vVA0), vr(t + 3), vr(vVA0)))
    A("v_and_b32 %s, 1, v0" % vr(t + 4)); A("v_lshl_add_u32 %s, %s, 3, %s" % (vr(vVA0), vr(t + 4), vr(vVA0)))
    A("v_add_u32 %s, %d, %s" % (vr(vVA0), VRING, vr(vVA0)))
    A("v_xor_b32 %s, 32, %s" % (vr(vVA1), vr(vVA0)))
    A("v_lshlrev_b32 %s, 4, v0" % vr(vLin)); A("v_add_u32 %s, s47, %s" % (vr(vLin), vr(vLin)))
    A("v_mov_b32 %s, %s" % (vr(vQW), vr(vLin)))
    A("v_and_b32 %s, 15, v0" % vr(t + 3))
    A("v_mul_u32_u24 %s, 272, %s" % (vr(vEW), vr(t + 3))); A("v_lshl_add_u32 %s, %s, 3, %s" % (vr(vEW), vr(t + 1), vr(vEW))); A("v_add_u32 %s, s47, %s" % (vr(vEW), vr(vEW)))
    A("v_mul_u32_u24 %s, 272, %s" % (vr(vER), vr(t + 1))); A("v_lshl_add_u32 %s, %s, 4, %s" % (vr(vER), vr(t + 3), vr(vER))); A("v_add_u32 %s, s47, %s" % (vr(vER), vr(vER)))
    A("v_cmp_gt_u32 vcc, 2, %s" % vr(t + 2)); A("v_mov_b32 %s, 0x3f803f80" % vr(t + 3)); A("v_mov_b32 %s, 0" % vr(vBad))
    for i in range(4): A("v_cndmask_b32 %s, 0, %s, vcc" % (vr(vONE + i), vr(t + 3)))
    A("v_cmp_eq_u32 vcc, 1, %s" % vr(t + 2)); A("v_mov_b32 %s, 0x44444444" % vr(vIDX)); A("v_mov_b32 %s, 0xeeeeeeee" % vr(t + 3))
    A("v_cndmask_b32 %s, %s, %s, vcc" % (vr(vIDX), vr(vIDX), vr(t + 3)))
    for i in range(16): A("v_mov_b32 %s, 0" % vr(vL + i))
    if O.stamps:
        A("s_lshl_b32 s42, s2, 2"); A("s_add_u32 s42, s42, %s" % sr(sWave)); A("s_lshl_b32 s57, s42, 9"); A("s_mov_b32 s56, 0")
        A("s_mov_b32 s54, 0x1000000"); A("s_mov_b32 s55, 0x20000")
    return L, L2

def prologue():
    su, su2 = setup()
    st = {'Q': 0, 'K': 0, 'V': 0}
    G = O.pro.split(',')
    L = su + [Env(lambda e: e.update(tile=0, ka=0, va0=0, va1=0, sM=0, sT=0))]
    L += pro_group(G[0], st)
    if O.prefetch:
        L += [I("s_getpc_b64 s[42:43]"), I("s_mul_i32 s44, %s, 6144" % sr(sWave)), I("v_lshlrev_b32 v1, 7, v0"), I("v_add_u32 v1, s44, v1"),
              I("global_load_dword v1, v1, s[42:43]")]
    L += su2 + stamp(0)
    L += [Wait(vm=w_dma('K', 0)), I("s_barrier")] + stamp(1)
    L += [k_read(i, 0) for i in range(16)]
    cb = conv_block(vO, vLin, 0, pk=True)
    L += cb[:1] + pro_group(G[1], st) + cb[1:]
    L += [q_read(0, ks) for ks in range(4)] + stamp(5)
    qk = [mfma_qk(0, a >> 2, a & 3) for a in range(16)]
    L += [Wait(lg=w_regs(ar(aQ, 4)))] + qk[:1] + [Wait(lg=w_regs(ar(aQ, 16)))] + qk[1:12]
    for a in range(12, 16): L += [exp(a - 12), qk[a]]
    for e in range(4, 12): L += [exp(e)] + ([cvtp(e - 3, 1)] if not e & 1 else [])
    L += [cvtp(9, 1), cvtp(11, 1)]
    cb = conv_block(vO + 32, vLin, 4096, pk=True)
    L += cb[:1] + pro_group(G[2], st) + cb[1:]
    L += [q_read(1, ks) for ks in range(4)] + stamp(6)
    L += [Wait(vm=w_dma('V', 0)), I("s_barrier")]
    L += pro_group(G[3], st)
    L += vlo_reads(0, 0) + vhi_reads(0, 0)
    L += [Wait(lg=w_regs(ar(aQ + 16, 16)))] + stamp(8)
    return L, st, G[4:]

def tile0(st, G):
    T = base_tile(0, czero=True)
    T.put(15, [Wait(lg=w_regs(ar(aVH, 96)))])
    c2 = conv_block(vO + 64, vLin, 8192) + [q_read(2, ks) for ks in range(4)]
    T.spread(c2, 1, NM - 4, front=False)
    T.put(NM - 1, [Wait(lg=w_regs(ar(aQ + 32, 16)))])
    g4 = pro_group(G[0], st)
    assert st == {'Q': 4, 'K': 3, 'V': 3}, st
    c3 = conv_block(vO + 96, vLin, 12288) + [q_read(3, ks) for ks in range(4)]
    c3 = c3[:1] + g4 + [I("s_mov_b32 %s, %d" % (sr(sT), 3 * 16384)), Env(lambda e: e.update(sT=3))] + c3[1:]
    T.spread(c3, NM + 1, 2 * NM - 4, front=False)
    T.put(2 * NM - 1, [Wait(lg=w_regs(ar(aQ + 48, 16)))])
    T.spread([delta_ops()[:1], delta_ops()[1:], adv(vVA0, 'va0'), adv(vVA1, 'va1'), adv(vKA, 'ka')], 2 * NM + 1, 2 * NM + 9, pack=True, front=False)
    T.put(2 * NM + 9, barrier(w_dma('K', 1)))
    T.spread([k_read(i, 1) for i in range(16)], 2 * NM + 11, 3 * NM - 4, mingap=lambda i: 2 * NM + i)
    T.put(3 * NM - 1, [Wait(lg=w_regs(ar(aK, 64)))])
    T.put(3 * NM + 5, [Wait(vm=w_dma('V', 1)), I("s_barrier")])
    T.spread(vhi_reads(1, 1)[:8], 3 * NM + 25, 4 * NM, pack=True)
    T.spread(vlo_reads(1, 1), 3 * NM + 7, 3 * NM + 24)
    T.put(4 * NM - 1, [Wait(lg=w_regs(ar(aVL, 64)))])
    T.spread(dma_seq(), 3 * NM + 7, 4 * NM - 1, front=False)
    T.put(3 * NM + 1, [I("s_mov_b32 %s, %d" % (sr(sEnd), (4 + 4) * 16384))])
    INFO.append(("T0", T.cycles()))
    return finish_tile(T)

def tile15():
    T = base_tile(1)
    steady(T, 1)
    for q in range(4):
        lo = 12 if q == 0 else (q - 1) * NM + 22
        T.spread([q_read(q, ks) for ks in range(4)], lo, lo + 8, front=False)
    return T

def switch_tiles():
    T15 = tile15()
    T16 = base_tile(0, czero=True); steady(T16, 0)
    T = TL(T15.a + T16.a); T.g = T15.g + T16.g; T.isexp = T15.isexp + T16.isexp
    T.g[4 * NM - 1].append([inc('tile')])
    lo = NM + 3; hi = 4 * NM + 3 * NM + 12
    w = (hi - lo) / 4.0
    prevS = []
    for q in range(4):
        Lq, Sq = epilogue(q, zero=True)
        a = max(int(lo + q * w), (q + 1) * NM + 7); b = min(int(lo + (q + 1) * w), 4 * NM + q * NM + 12)
        k = 14
        T.spread(Lq[:k] + prevS + Lq[k:], a, b, front=False)
        prevS = Sq
    T.spread(prevS, hi + 6, hi + 14, front=False)
    T.put(hi + 15, [I("s_mov_b32 %s, 131072" % sr(sO1))])
    T.put(hi + 15, [I("s_mov_b32 %s, %d" % (sr(sEnd), (30 + 4) * 16384))])
    T.put(T.n - 1, [I("s_branch LOOPP")])
    INFO.append(("T15+16", T.cycles()))
    return finish_tile(T)

def tile31():
    T = base_tile(1, last=True)
    steady(T, 1, nxt=False)
    prevS = []
    for q in range(3):
        Lq, Sq = epilogue(q)
        a = (q + 1) * NM + 7; b = min((q + 2) * NM + 7, T.n)
        k = 14
        T.spread(Lq[:k] + prevS + Lq[k:], a, b, front=False)
        prevS = Sq
    INFO.append(("T31", T.cycles()))
    Lq, Sq = epilogue(3, pk=True)
    L = finish_tile(T) + Lq[:4] + prevS + Lq[4:]
    chk = [I("v_cmp_lt_u32 vcc, 0x20000000, %s" % vr(vBad))]
    return L + chk + Sq

def fallback():
    vM = vR
    pre = [I("FALLBACK:"), I("s_waitcnt vmcnt(0) lgkmcnt(0)"), I("s_lshl_b32 s46, %s, 12" % sr(sWave)), I("s_lshl_b32 s47, %s, 14" % sr(sWave))]
    pre += [I("v_subrev_u32 %s, s46, %s" % (vr(vDM + j), vr(vDM + j))) for j in range(4)]
    for r in (vVA0, vVA1):
        pre += [I("v_and_b32 %s, 0x3fff, %s" % (vr(r), vr(r))), I("v_add_u32 %s, s47, %s" % (vr(r), vr(r)))]
    pre += [I("s_mov_b32 %s, 0" % sr(sO1)), I("s_mov_b32 %s, 0" % sr(sEnd))]
    def stage(srd, soff):
        L = []
        for x in range(4):
            L += [I("s_add_u32 m0, s47, %d" % (x * 4096)), I("s_add_u32 s44, %s, %d" % (soff, x * 4096))]
            L += [I("buffer_load_dwordx4 %s, %s, s44 offen offset:%d lds" % (vr(vDM + j), sr(srd, 4), j * 1024)) for j in range(4)]
        return L + [I("s_waitcnt vmcnt(0)")]
    def kreads():
        L = []
        for i in range(16):
            L.append(k_read(i, 0, addr=vQA, chk=False))
            if i & 7 == 7: L.append(I("s_waitcnt lgkmcnt(0)"))
        return L
    blk = [I("FB_BLK:"), I("s_add_u32 s45, %s, s47" % sr(sO1))] + stage(S_Q, "s45")
    for q in range(4):
        blk += [q_read(q, ks) for ks in range(4)] + [I("s_waitcnt lgkmcnt(0)")]
    blk += [I("v_mov_b32 %s, 0xff800000" % vr(vM + q)) for q in range(4)]
    blk += [I("s_mov_b32 %s, %s" % (sr(sT), sr(sEnd))), I("s_add_u32 %s, %s, 262144" % (sr(sEnd), sr(sEnd)))]
    p1 = [I("FB_P1:")] + stage(S_K, sr(sT)) + kreads()
    for q in range(4):
        p1 += [mfma_qk(q, a >> 2, a & 3) for a in range(16)] + [I("s_nop 7")]
        p1 += [I("v_max3_f32 %s, %s, %s, %s" % (vr(vM + q), vr(vM + q), vr(vS + 2 * i), vr(vS + 2 * i + 1))) for i in range(8)]
        p1 += [I("s_nop 1")]
    p1 += [I("s_add_u32 %s, %s, 16384" % (sr(sT), sr(sT))), I("s_cmp_lt_u32 %s, %s" % (sr(sT), sr(sEnd))), I("s_cbranch_scc1 FB_P1")]
    mid = []
    for q in range(4):
        for op in ("v_permlane32_swap_b32", "v_permlane16_swap_b32"):
            mid += [I("v_mov_b32 %s, %s" % (vr(vT), vr(vM + q))), I("s_nop 1"), I("%s %s, %s" % (op, vr(vT), vr(vM + q))), I("s_nop 1"),
                    I("v_max_f32 %s, %s, %s" % (vr(vM + q), vr(vT), vr(vM + q)))]
    mid += [I("v_mov_b32 %s, 0" % vr(vO + i)) for i in range(128)] + [I("v_mov_b32 %s, 0" % vr(vL + i)) for i in range(16)]
    mid += [I("s_sub_u32 %s, %s, 262144" % (sr(sT), sr(sT)))]
    p2 = [I("FB_P2:")] + stage(S_K, sr(sT)) + kreads() + stage(S_V, sr(sT))
    n = 0
    for db in range(8):
        for h in range(2):
            for u in range(2):
                p2.append(v_read(db, h, u, 0, 0, chk=False)); n += 1
                if n % 8 == 0: p2.append(I("s_waitcnt lgkmcnt(0)"))
    for q in range(4):
        p2 += [mfma_qk(q, a >> 2, a & 3) for a in range(16)] + [I("s_nop 7")]
        for e in range(16):
            p2 += [I("v_sub_f32 %s, %s, %s" % (vr(vS + e), vr(vS + e), vr(vM + q))), I("v_mul_f32 %s, %s, %s" % (vr(vS + e), sr(sC), vr(vS + e))), exp(e)]
        p2 += [I("s_nop 0")] + [cvtp(e, 0) for e in range(1, 16, 2)] + [I("s_nop 1")]
        p2 += [mfma_pv(q, a >> 1, a & 1, 0, 0) for a in range(16)] + [mfma_l(q, 0)]
    p2 += [I("s_add_u32 %s, %s, 16384" % (sr(sT), sr(sT))), I("s_cmp_lt_u32 %s, %s" % (sr(sT), sr(sEnd))), I("s_cbranch_scc1 FB_P2")]
    fin = [I("s_nop 7")]
    for q in range(4):
        Lq, Sq = epilogue(q, check=False)
        fin += Lq + Sq
    fin += [I("s_mov_b32 %s, 131072" % sr(sO1)), I("s_cmp_lt_u32 %s, 524288" % sr(sEnd)), I("s_cbranch_scc1 FB_BLK"), I("s_endpgm")]
    return pre, blk, p1, mid, p2, fin

def resolve(trace):
    vmq = []; lgq = []; env = {}
    from asmlib import parse_wait
    for x in trace:
        if x.kind == 'env': x.fn(env); continue
        if x.kind == 'label': continue
        if x.kind == 'autowait':
            for q, pred, attr, mx in ((vmq, x.vm, 'nvm', 63), (lgq, x.lg, 'nlg', 15)):
                if pred is None: continue
                idx = [i for i, (p, tag) in enumerate(q) if pred(p, tag, env)]
                if not idx: continue
                n = min(len(q) - 1 - idx[-1], mx)
                if attr == 'nlg' and any(p.kind == 'smem' for p, _ in q): n = 0
                cur = getattr(x, attr)
                setattr(x, attr, n if cur is None else min(cur, n))
                del q[:len(q) - n]
            continue
        meta = x.meta(env) if callable(x.meta) else x.meta
        if x.kind in VMEMK: vmq.append((x, meta))
        elif x.kind in ('dsr', 'dsw', 'smem'): lgq.append((x, meta))
        elif x.kind == 'wait':
            vm, lg = parse_wait(x.text)
            if vm is not None and len(vmq) > vm: del vmq[:len(vmq) - vm]
            if lg is not None and len(lgq) > lg: del lgq[:len(lgq) - lg]
    for x in trace:
        if x.kind == 'autowait' and x.inst is None and (x.nvm is not None or x.nlg is not None):
            t = "s_waitcnt" + (" vmcnt(%d)" % x.nvm if x.nvm is not None else "") + (" lgkmcnt(%d)" % x.nlg if x.nlg is not None else "")
            x.inst = I(t)
def lower(L):
    out = []
    for x in L:
        if x.kind == 'autowait':
            if x.inst is not None: out.append(x.inst)
        else: out.append(x)
    return out

def build():
    pro, st, G = prologue()
    t0 = tile0(st, G)
    lp = [I("LOOPP:")] + tile_plain(1, name="P1") + tile_plain(0, endx=[I("s_cmp_lg_u32 %s, %s" % (sr(sT), sr(sEnd))), I("s_cbranch_scc1 LOOPP")], name="P0")
    d1 = [I("s_cmp_eq_u32 %s, %d" % (sr(sEnd), 8 * 16384)), I("s_cbranch_scc1 STUB")]
    d2 = [I("s_cmp_eq_u32 %s, %d" % (sr(sEnd), 34 * 16384)), I("s_cbranch_scc1 T31")]
    def after(j): return [q_load(vR, j, sr(sQ1))]
    cb = conv_block(vR, vQW, 0, after=after)
    half = len(cb) // 2
    qpre = [I("s_add_u32 %s, %s, 4096" % (sr(sQ1), sr(sQ1)))]
    qpost = [I("v_add_u32 %s, 4096, %s" % (vr(vQW), vr(vQW)))]
    lq = [I("LOOPQ:")] + tile_plain(1, extra=qpre + cb[:half], name="Q1") + \
        tile_plain(0, extra=cb[half:] + qpost, endx=[I("s_cmp_lg_u32 %s, %d" % (sr(sT), 18 * 16384)), I("s_cbranch_scc1 LOOPQ")], name="Q0")
    sw = stamp(9) + switch_tiles()
    t31 = [I("T31:")] + stamp(12) + tile31()
    fin = []
    if O.stamps:
        fin = stamp(13) + [I("s_waitcnt vmcnt(0)")] + stamp(2) + [I("s_memrealtime s[58:59]"), I("s_waitcnt lgkmcnt(0)"), I("v_writelane_b32 %s, s58, 7" % vr(vSt)),
              I("v_lshlrev_b32 v1, 2, v0"), I("buffer_store_dword %s, v1, s[52:55], s57 offen" % vr(vSt)), I("buffer_store_dword %s, v1, s[52:55], s57 offen offset:256" % vr(vSt + 1))]
    if not (O.drop or O.nofb): fin += [I("s_cbranch_vccnz FALLBACK")]
    end = [I("END:"), I("s_endpgm")]
    stub = [I("STUB:"), I("s_add_u32 %s, %s, %d" % (sr(sQ1), sr(sQ1), 131072 - 16384))] + [q_load(vR, j, sr(sQ1)) for j in range(4)] + \
        [I("s_mov_b32 %s, %d" % (sr(sEnd), 10 * 16384)), I("s_branch LOOPP")]
    fb = fallback()
    static = pro + t0 + lp + d1 + d2 + lq + sw + t31 + fin + end + stub
    for x in fb: static += x
    T = pro + t0 + lp * 2 + d1 + stub + lp + d1 + d2 + lq * 4 + sw + lp * 7 + d1 + d2 + t31 + fin
    pre, blk, p1, mid, p2, ffin = fb
    T += pre + (blk + p1 * 2 + mid + p2 * 2 + ffin) * 2
    resolve(T)
    env = {}
    errs = check_trace(lower(T), env) + check_scc(lower(T))
    assert env['tile'] == 32 and env['sT'] == 34, env
    return lower(static), errs

HEADER = open('standalone__gqa_softmax__near_ridge.s.ref').read().split('; Override')[0]

def emit(static):
    out = [HEADER.rstrip('\n')]
    out.append("; @launch grid=(256,1,1) block=(256,1,1) lds=163840")
    out.append('.amdgcn_target "amdgcn-amd-amdhsa--gfx950"\n.text\n.globl %s\n.p2align 8\n.type %s,@function\n%s:' % (NAME, NAME, NAME))
    for x in static:
        if x.kind == 'env': continue
        out.append(x.text if x.kind == 'label' else "    " + x.text)
    out.append('.section .rodata,"a"\n.p2align 6\n.amdhsa_kernel %s\n  .amdhsa_next_free_vgpr 512\n  .amdhsa_next_free_sgpr 102\n  .amdhsa_accum_offset 256\n  .amdhsa_group_segment_fixed_size 0\n  .amdhsa_kernarg_size 48\n  .amdhsa_user_sgpr_count 2\n  .amdhsa_user_sgpr_kernarg_segment_ptr 1\n  .amdhsa_system_sgpr_workgroup_id_x 1\n.end_amdhsa_kernel' % NAME)
    return "\n".join(out) + "\n"

if __name__ == "__main__":
    outp = sys.argv[1]
    for a in sys.argv[2:]:
        k, v = a.split('=')
        cur = getattr(O, k)
        setattr(O, k, (v not in ('0', 'False')) if isinstance(cur, bool) else type(cur)(v))
    static, errs = build()
    seen = set()
    for e in errs:
        if e not in seen:
            seen.add(e)
            if not O.drop: print(e)
    print("errors:", len(errs), "unique", len(seen), INFO)
    open(outp, 'w').write(emit(static))
    import subprocess
    r = subprocess.run(["clang", "-x", "assembler", "-target", "amdgcn-amd-amdhsa", "-mcpu=gfx950", "-c", outp, "-o", "gen_test.o"], capture_output=True, text=True)
    print(r.stderr[:3000] if r.returncode else "assembled ok")
    r = subprocess.run("llvm-size gen_test.o", shell=True, capture_output=True, text=True); print(r.stdout)
```

```python
import sys, struct, math
from asmlib import Inst, Env, check_trace, parse_regs, VMEMK

NAME = "standalone__gqa_softmax__near_ridge_kernel"
def f2u(x): return struct.unpack('<I', struct.pack('<f', x))[0]

class Opt:
    stamps = False
    kv_mod = ""
    q_mod = ""
    store_mod = ""
    drop = ""
    prefetch = False
    bar = 21
    dma_lo = 25; dma_hi = 66
    vlo_lo = 33; vlo_hi = 66
    k_lo = 67; k_hi = 92
    pro = "KQQ,VQ,QK,V,KV"
    nofb = False
    map = 0
    dbg = False
O = Opt()

S_Q, S_K, S_V, S_O = 12, 16, 20, 24
sC, sT, sM, sM2, sD, sEnd, sMask, sLo, sQ1, sO1, sP16, sWave = range(28, 40)
sC2 = 40
sTmp = 42
sStamp = 48
S_WS = 52

vKA, vVA0, vVA1, vQA, vLin, vEW, vER, vBad = range(2, 10)
vDM = 10
vIDX = 14
vQW = 15
vONE = 16
vS = 20
vP = 36
vL = 52
vR = 68
vE = 84
vF = 100
vT = 116
vSt = 126
vO = 128
aQ, aK, aVH, aVL = 0, 64, 128, 160
KRING, VRING = 65536, 114688
NM = 33

def vr(b, n=1): return "v%d" % b if n == 1 else "v[%d:%d]" % (b, b + n - 1)
def ar(b, n=1): return "a%d" % b if n == 1 else "a[%d:%d]" % (b, b + n - 1)
def sr(b, n=1): return "s%d" % b if n == 1 else "s[%d:%d]" % (b, b + n - 1)
I = Inst
def regs(s): return set(parse_regs(s))

class Wait:
    kind = 'autowait'; op = 's_waitcnt'
    def __init__(self, vm=None, lg=None):
        self.vm = vm; self.lg = lg; self.nvm = None; self.nlg = None; self.inst = None
    @property
    def text(self): return self.inst.text if self.inst else None
def w_regs(s):
    r = regs(s)
    return lambda p, tag, e: bool(p.wr & r)
def w_dma(which, dt):
    return lambda p, tag, e: p.kind == 'dma' and tag is not None and tag[0][0] in which and tag[1] <= e['tile'] + dt
def w_all(p, tag, e): return True

def vfrag(db, h, par):
    return (aVL + 32 * par + 8 * db + 4 * h) if db < 4 else (aVH + 8 * (db - 4) + 4 * h)
def mfma_qk(q, y, ks):
    D = vr(vS + 4 * y, 4)
    return I("v_mfma_f32_16x16x32_bf16 %s, %s, %s, %s" % (D, ar(aK + 16 * y + 4 * ks, 4), ar(aQ + 16 * q + 4 * ks, 4), "0" if ks == 0 else D))
def mfma_pv(q, db, h, par, pb, czero=False):
    D = vr(vO + 32 * q + 4 * db, 4)
    return I("v_mfma_f32_16x16x32_bf16 %s, %s, %s, %s" % (D, ar(vfrag(db, h, par), 4), vr(vP + 8 * pb + 4 * h, 4), "0" if czero else D))
def mfma_l(q, pb):
    return I("v_smfmac_f32_16x16x64_bf16 %s, %s, %s, %s" % (vr(vL + 4 * q, 4), vr(vONE, 4), vr(vP + 8 * pb, 8), vr(vIDX)))
def exp(e): return I("v_exp_f32 %s, %s" % (vr(vS + e), vr(vS + e)))
def cvtp(e, pb): return I("v_cvt_pk_bf16_f32 %s, %s, %s" % (vr(vP + 8 * pb + e // 2), vr(vS + e - 1), vr(vS + e)))

def k_read(i, dt, addr=vKA, chk=True):
    y, ks = i >> 2, i & 3
    return I("ds_read_b128 %s, %s offset:%d" % (ar(aK + 4 * i, 4), vr(addr), ks * 256 + y * 4096),
             meta=(lambda e: (('K', e['ka']), e['tile'] + dt)) if chk else None)
def v_read(db, h, u, par, dt, chk=True):
    y = 2 * h + u
    return I("ds_read_b64_tr_b16 %s, %s offset:%d" % (ar(vfrag(db, h, par) + 2 * u, 2), vr(vVA0 + (db & 1)), (db >> 1) * 256 + y * 4096),
             meta=(lambda e: (('V', e['va%d' % (db & 1)]), e['tile'] + dt)) if chk else None)
def q_read(q, ks):
    return I("ds_read_b128 %s, %s offset:%d" % (ar(aQ + 16 * q + 4 * ks, 4), vr(vQA), ks * 256 + q * 4096))
def dma(which, j):
    srd = S_K if which == 'K' else S_V
    return I("buffer_load_dwordx4 %s, %s, %s offen offset:%d %slds" % (vr(vDM + j), sr(srd, 4), sr(sT), j * 1024, O.kv_mod),
             meta=lambda e: (e['m0'], e['sT'], True))
def set_m0(which):
    if which == 'K': i = I("s_mov_b32 m0, %s" % sr(sM))
    else: i = I("s_add_u32 m0, %s, %d" % (sr(sM), VRING - KRING))
    return [i, Env(lambda e: e.__setitem__('m0', (which, e['sM'])))]
def inc(key, mod=None):
    return Env(lambda e: e.__setitem__(key, (e[key] + 1) % mod if mod else e[key] + 1))
def delta_ops():
    return [I("s_cmp_eq_u32 %s, %s" % (sr(sM), sr(sM2))), I("s_cselect_b32 %s, 0xffff8000, %s" % (sr(sD), sr(sP16))),
            Env(lambda e: e.__setitem__('dfrom', e['sM']))]
def adv(reg, key):
    def f(e):
        assert e[key] == e['dfrom'], (key, e)
        e[key] = (e[key] + 1) % 3
    if key == 'sM': return [I("s_add_u32 %s, %s, %s" % (sr(sM), sr(sM), sr(sD))), Env(f)]
    return [I("v_add_u32 %s, %s, %s" % (vr(reg), sr(sD), vr(reg))), Env(f)]
def dma_seq():
    U = []
    for w in 'KV':
        U.append(set_m0(w))
        for j in range(4): U.append([dma(w, j)])
    U.append([I("s_add_u32 %s, %s, 16384" % (sr(sT), sr(sT))), inc('sT')])
    U.append(adv(None, 'sM'))
    return U

def q_load(dst, j, soff):
    return I("buffer_load_dwordx4 %s, %s, %s, %s offen offset:%d%s" % (vr(dst + 4 * j, 4), vr(vDM + j), sr(S_Q, 4), soff, j * 1024, O.q_mod))
def conv(r, k, pk=False):
    t = vT + 2 * (k & 1)
    L = [I("v_lshlrev_b32 %s, 16, %s" % (vr(t), vr(r))), I("v_and_b32 %s, %s, %s" % (vr(t + 1), sr(sMask), vr(r)))]
    if pk: L.append(I("v_pk_mul_f32 %s, %s, %s" % (vr(t, 2), vr(t, 2), sr(sC2, 2))))
    else: L += [I("v_mul_f32 %s, %s, %s" % (vr(t), sr(sC), vr(t))), I("v_mul_f32 %s, %s, %s" % (vr(t + 1), sr(sC), vr(t + 1)))]
    L.append(I("v_cvt_pk_bf16_f32 %s, %s, %s" % (vr(r), vr(t), vr(t + 1))))
    return L
def conv_block(src, addr, off, pk=False, after=None):
    L = []
    for j in range(4):
        L.append(Wait(vm=w_regs(vr(src + 4 * j, 4))))
        for i in range(4): L += conv(src + 4 * j + i, i, pk)
        L.append(I("ds_write_b128 %s, %s offset:%d" % (vr(addr), vr(src + 4 * j, 4), off + j * 1024)))
        if after: L += after(j)
    return L

def epilogue(q, check=True, zero=False, pk=False):
    t = vT + 4
    L = [I("v_add_f32 %s, %s, %s" % (vr(t), vr(vL + 4 * q), vr(vL + 4 * q + 1))), I("v_rcp_f32 %s, %s" % (vr(t + 2), vr(t)))]
    if check: L += [I("v_subrev_u32 %s, %s, %s" % (vr(t), sr(sLo), vr(t))), I("v_max_u32 %s, %s, %s" % (vr(vBad), vr(vBad), vr(t)))]
    else: L += [I("s_nop 0")]
    if zero: L += [I("v_mov_b32 %s, 0" % vr(vL + 4 * q)), I("v_mov_b32 %s, 0" % vr(vL + 4 * q + 1))]
    for db in range(8):
        o = vO + 32 * q + 4 * db
        if pk:
            for i in (0, 2): L.append(I("v_pk_mul_f32 %s, %s, %s op_sel_hi:[1,0]" % (vr(o + i, 2), vr(o + i, 2), vr(t + 2, 2))))
        else:
            for i in range(4): L.append(I("v_mul_f32 %s, %s, %s" % (vr(o + i), vr(t + 2), vr(o + i))))
        for i in range(2): L.append(I("v_cvt_pk_bf16_f32 %s, %s, %s" % (vr(vE + 2 * db + i), vr(o + 2 * i), vr(o + 2 * i + 1))))
        L.append(I("ds_write_b64 %s, %s offset:%d" % (vr(vEW), vr(vE + 2 * db, 2), 32 * db)))
    for j in range(4): L.append(I("ds_read_b128 %s, %s offset:%d" % (vr(vF + 4 * j, 4), vr(vER), j * 1088)))
    S = []
    for j in range(4):
        S.append(Wait(lg=w_regs(vr(vF + 4 * j, 4))))
        S.append(I("buffer_store_dwordx4 %s, %s, %s, %s offen offset:%d%s" % (vr(vF + 4 * j, 4), vr(vLin), sr(S_O, 4), sr(sO1), j * 1024, O.store_mod)))
    S.append(I("s_add_u32 %s, %s, 4096" % (sr(sO1), sr(sO1))))
    return L, S

def cost(x):
    if x.kind in ('env', 'label'): return 0
    if x.kind == 'trans': return 8
    return 4
MEMK = ('dsr', 'dsw', 'dma', 'vld', 'vst')

class TL:
    def __init__(self, anchors):
        self.a = anchors; self.n = len(anchors)
        self.g = [[] for _ in anchors]
        self.isexp = [False] * self.n
    def used(self, g): return sum(cost(x) for u in self.g[g] for x in u)
    def put(self, g, u, front=False):
        if not isinstance(u, list): u = [u]
        if front: self.g[g].insert(0, u)
        else: self.g[g].append(u)
        if any(x.kind == 'trans' for x in u): self.isexp[g] = True
    def spread(self, units, lo, hi, mingap=None, front=True, pack=False):
        units = [u if isinstance(u, list) else [u] for u in units]
        need = sum(cost(x) for u in units for x in u)
        cand = [g for g in range(lo, hi) if not self.isexp[g]]
        cap = {g: max(0, 8 - self.used(g)) for g in cand}
        tot = sum(cap.values())
        k = 0
        while tot < need:
            deficit = (need - tot + 3) // 4
            if deficit >= len(cand):
                for g in cand: cap[g] += 4
                tot += 4 * len(cand)
            else:
                for i in range(deficit): cap[cand[int((i + 0.5) * len(cand) / deficit)]] += 4
                tot += 4 * deficit
        slots = []
        for g in cand: slots += [g] * (cap[g] // 4)
        ns = need // 4
        pos = 0; ins = {}
        last = lo
        for idx, u in enumerate(units):
            c = sum(cost(x) for x in u) // 4
            si = pos if pack else int(pos * len(slots) / max(ns, 1))
            g = slots[min(si, len(slots) - 1)]
            if mingap and g < mingap(idx):
                g = min(x for x in cand if x >= mingap(idx))
            g = max(g, last); last = g
            ins.setdefault(g, []).append(u)
            pos += c
        for g, us in ins.items():
            if front: self.g[g] = us + self.g[g]
            else: self.g[g] += us
    def flat(self):
        out = []
        for g in range(self.n):
            if self.a[g] is not None: out.append(self.a[g])
            for u in self.g[g]: out += u
        return out
    def cycles(self):
        return sum(max(16 if self.a[g] is not None else 0, (8 if self.a[g] is not None else 0) + self.used(g)) for g in range(self.n))

def stamp_ops(kind):
    if not O.stamps: return []
    if kind == 'pre': return [I("s_memtime s[48:49]")]
    return [I("s_memtime s[50:51]"), I("s_waitcnt lgkmcnt(0)"), I("s_mov_b32 m0, s56"), I("s_add_u32 s56, s56, 1"), I("v_writelane_b32 %s, s48, m0" % vr(vSt + 1)),
            I("s_add_u32 m0, m0, 32"), I("s_nop 0"), I("v_writelane_b32 %s, s50, m0" % vr(vSt + 1))]
def stamp(idx):
    if not O.stamps: return []
    return [I("s_memtime %s" % sr(sStamp, 2)), I("s_waitcnt lgkmcnt(0)"), I("v_writelane_b32 %s, %s, %d" % (vr(vSt), sr(sStamp), idx))]

def base_tile(par, czero=False, last=False):
    A = []
    for p in range(4):
        if last and p == 3:
            A += [mfma_pv(p, db, 0, par, 1 - (p & 1)) for db in range(8)]
            A += [mfma_l(p, 1 - (p & 1))]
            A += [mfma_pv(p, db, 1, par, 1 - (p & 1)) for db in range(8)]
            continue
        for a in range(16): A.append(mfma_qk((p + 1) & 3, a >> 2, a & 3))
        for a in range(16): A.append(mfma_pv(p, a >> 1, a & 1, par, 1 - (p & 1), czero and not (a & 1)))
        A.append(mfma_l(p, 1 - (p & 1)))
    T = TL(A)
    for p in range(-1, 4):
        if last and p == 3: continue
        for e in range(16):
            g = NM * p + 8 + 2 * e + (1 if e >= 12 else 0)
            if last and p == 2 and e >= 12: g = NM * 3 + (e - 12) + (e - 12) // 2
            if 0 <= g < T.n:
                T.put(g, exp(e))
                if e & 1: T.put(g + 1, cvtp(e, p & 1))
    return T

def vhi_reads(par_next, dt):
    return [v_read(db, h, u, par_next, dt) for db in range(4, 8) for h in range(2) for u in range(2)]
def vlo_reads(par_next, dt):
    return [v_read(db, h, u, par_next, dt) for db in range(4) for h in range(2) for u in range(2)]

def barrier(vm, lg=None):
    return stamp_ops('pre') + [Wait(vm=vm, lg=(w_all if O.stamps else lg)), I("s_barrier")] + stamp_ops('post')

def steady(T, par, carry=True, nxt=True):
    if carry:
        T.spread(vhi_reads(par, 0)[8:], 0, 12, pack=True)
    if not nxt:
        T.put(21, [Wait(lg=w_regs(ar(aVH, 32)))])
        return
    bar = O.bar
    if bar > 23: T.put(21, [Wait(lg=w_regs(ar(aVH, 32)))])
    T.put(bar, barrier(w_dma('KV', 1), w_regs(ar(aVH, 32))))
    T.spread([delta_ops()[:1], delta_ops()[1:], adv(vVA0, 'va0'), adv(vVA1, 'va1'), adv(vKA, 'ka')], 13, 21, pack=True, front=False)
    T.spread(vhi_reads(1 - par, 1)[:8], 3 * NM + 25, 4 * NM, pack=True)
    T.spread([k_read(i, 1) for i in range(16)], O.k_lo, O.k_hi, mingap=lambda i: 2 * NM + i)
    T.put(3 * NM - 1, [Wait(lg=w_regs(ar(aK, 64)))])
    T.spread(vlo_reads(1 - par, 1), O.vlo_lo, O.vlo_hi)
    if O.vlo_hi > O.k_hi: T.put(4 * NM - 1, [Wait(lg=w_regs(ar(aVL, 64)))])
    T.spread(dma_seq(), O.dma_lo, O.dma_hi)

def fix_m0(L):
    i = 0
    while i < len(L):
        x = L[i]
        if x.kind == 'salu' and ('s', 'm0') in x.wr:
            j = i + 1
            while L[j].kind == 'env': j += 1
            if L[j].kind == 'dma':
                k = i - 1
                while L[k].kind == 'env': k -= 1
                assert L[k].kind in ('mfma', 'valu', 'trans', 'dsr'), L[k].text
                L[k:j] = L[i:j] + L[k:i]
        i += 1
    return L

def check_scc(T):
    last = None; errs = []
    for x in T:
        if x.kind in ('env', 'label'): continue
        op = x.op
        if op.startswith('s_cselect') or op.startswith('s_cbranch_scc'):
            if not last.startswith('s_cmp'): errs.append("SCC: %s after %s" % (x.text, last))
        if op.startswith('s_addc') and not last.startswith('s_add_u32'): errs.append("SCC addc " + x.text)
        if x.kind == 'salu' and not (op.startswith('s_mov') or op.startswith('s_cselect') or op.startswith('s_mul') or op.startswith('s_getpc')): last = x.text
    return errs

def finish_tile(T):
    L = fix_m0(T.flat())
    if O.drop:
        dl = O.drop.split(',')
        def keep(x):
            if 'dma' in dl and x.kind == 'dma': return False
            if 'k' in dl and x.op == 'ds_read_b128': return False
            if 'v' in dl and x.op == 'ds_read_b64_tr_b16': return False
            if 'bar' in dl and x.kind == 'barrier': return False
            return True
        L = [x for x in L if x.kind in ('env', 'label') or keep(x)]
    return L + [inc('tile')]

INFO = []
def tile_plain(par, endx=None, extra=None, name=""):
    T = base_tile(par)
    steady(T, par)
    if endx: T.put(T.n - 4, endx[:1]); T.put(T.n - 1, endx[1:])
    if extra: T.spread(extra, 0, T.n - 1, front=False)
    INFO.append((name, T.cycles()))
    return finish_tile(T)

def pro_group(spec, st):
    L = []
    for c in spec:
        if c == 'Q':
            q = st['Q']; st['Q'] += 1
            L += [q_load(vO + 32 * q, j, sr(sQ1)) for j in range(4)]
            L.append(I("s_add_u32 %s, %s, 4096" % (sr(sQ1), sr(sQ1))))
        else:
            t = st[c]; st[c] += 1
            base = t * 16384 + (VRING - KRING if c == 'V' else 0)
            L += [I("s_add_u32 m0, %s, %d" % (sr(sM), base)), I("s_mov_b32 %s, %d" % (sr(sT), t * 16384)),
                  Env(lambda e, c=c, t=t: e.update(m0=(c, t), sT=t))]
            L += [dma(c, j) for j in range(4)]
    return L

def setup():
    L = []
    A = lambda t: L.append(I(t))
    A("s_cmp_ge_u32 s2, 256"); A("s_cbranch_scc1 END")
    if O.stamps:
        A("s_memrealtime s[58:59]"); A("s_waitcnt lgkmcnt(0)"); A("v_writelane_b32 %s, s58, 4" % vr(vSt))
    L += stamp(3)
    if O.dbg:
        A("s_memrealtime s[58:59]"); A("s_memtime s[60:61]"); A("s_load_dwordx2 s[52:53], s[0:1], 32"); A("s_mov_b32 s54, 256"); A("s_mov_b32 s55, 0x20000")
    A("s_load_dwordx4 s[4:7], s[0:1], 0"); A("s_load_dwordx4 s[8:11], s[0:1], 16")
    if O.stamps: A("s_load_dwordx2 s[52:53], s[0:1], 40")
    A("v_lshrrev_b32 v1, 6, v0"); A("v_and_b32 v0, 63, v0")
    A("v_readfirstlane_b32 %s, v1" % sr(sWave))
    if O.map == 0:
        A("s_lshr_b32 s42, s2, 4"); A("s_lshl_b32 s42, s42, 3"); A("s_and_b32 s43, s2, 7"); A("s_add_u32 s42, s42, s43")
        A("s_lshr_b32 s43, s2, 3"); A("s_and_b32 s43, s43, 1")
    else:
        A("s_lshr_b32 s42, s2, 1"); A("s_and_b32 s43, s2, 1")
    A("s_lshl_b32 s44, s42, 19")
    A("s_lshl_b32 s45, s42, 18"); A("s_lshl_b32 s43, s43, 16"); A("s_add_u32 s45, s45, s43")
    A("s_lshl_b32 s46, %s, 12" % sr(sWave))
    A("s_add_u32 %s, s46, %d" % (sr(sM), KRING))
    A("s_mul_i32 %s, %s, 12288" % (sr(sQ1), sr(sWave)))
    t = vT
    A("v_bfe_u32 %s, v0, 2, 2" % vr(t))
    A("v_lshrrev_b32 %s, 4, v0" % vr(t + 1))
    A("v_and_b32 %s, 3, v0" % vr(t + 2))
    A("v_lshlrev_b32 %s, 8, %s" % (vr(vDM), vr(t)))
    A("v_lshl_add_u32 %s, %s, 6, %s" % (vr(vDM), vr(t + 1), vr(vDM)))
    A("v_lshl_add_u32 %s, %s, 4, %s" % (vr(vDM), vr(t + 2), vr(vDM)))
    A("v_add_u32 %s, s46, %s" % (vr(vDM), vr(vDM)))
    for j in range(1, 4): A("v_xor_b32 %s, %d, %s" % (vr(vDM + j), ((4 - j) & 3) * 16, vr(vDM)))
    A("s_lshl_b32 s47, %s, 14" % sr(sWave))
    for srd, n in ((S_Q, 196608), (S_K, 524288), (S_V, 524288), (S_O, 196608)):
        if srd == S_Q: A("s_add_u32 %s, s47, %d" % (sr(srd + 2), 131072 + 16384))
        else: A("s_mov_b32 %s, %d" % (sr(srd + 2), n))
        A("s_mov_b32 %s, 0x20000" % sr(srd + 3))
    A("s_waitcnt lgkmcnt(0)")
    for (srd, p, off) in ((S_K, 6, 44), (S_Q, 4, 45), (S_V, 8, 44), (S_O, 10, 45)):
        A("s_add_u32 %s, s%d, s%d" % (sr(srd), p, off)); A("s_addc_u32 %s, s%d, 0" % (sr(srd + 1), p + 1))
    L2 = []
    A = lambda t: L2.append(I(t))
    A("s_add_u32 %s, %s, 32768" % (sr(sM2), sr(sM)))
    A("s_mov_b32 %s, 0x%08x" % (sr(sC), f2u(128 ** -0.5 * math.log2(math.e))))
    A("s_mov_b32 %s, %s" % (sr(sC2), sr(sC))); A("s_mov_b32 %s, %s" % (sr(sC2 + 1), sr(sC)))
    A("s_mov_b32 %s, 0xffff0000" % sr(sMask)); A("s_mov_b32 %s, 0x%08x" % (sr(sLo), f2u(2.0 ** -32)))
    A("s_mov_b32 %s, 16384" % sr(sP16)); A("s_mov_b32 %s, 0" % sr(sO1))
    A("v_sub_u32 %s, 0, %s" % (vr(t + 3), vr(t))); A("v_and_b32 %s, 3, %s" % (vr(t + 3), vr(t + 3))); A("v_xor_b32 %s, %s, %s" % (vr(t + 3), vr(t + 1), vr(t + 3)))
    A("v_lshlrev_b32 %s, 10, %s" % (vr(vQA), vr(t)))
    A("v_lshl_add_u32 %s, %s, 6, %s" % (vr(vQA), vr(t + 2), vr(vQA)))
    A("v_lshl_add_u32 %s, %s, 4, %s" % (vr(vQA), vr(t + 3), vr(vQA)))
    A("v_add_u32 %s, %d, %s" % (vr(vKA), KRING, vr(vQA)))
    A("v_add_u32 %s, s47, %s" % (vr(vQA), vr(vQA)))
    A("v_sub_u32 %s, 0, %s" % (vr(t + 3), vr(t + 1))); A("v_and_b32 %s, 3, %s" % (vr(t + 3), vr(t + 3)))
    A("v_lshrrev_b32 %s, 1, %s" % (vr(t + 4), vr(t + 2))); A("v_xor_b32 %s, %s, %s" % (vr(t + 3), vr(t + 4), vr(t + 3)))
    A("v_lshlrev_b32 %s, 10, %s" % (vr(vVA0), vr(t + 1)))
    A("v_lshl_add_u32 %s, %s, 6, %s" % (vr(vVA0), vr(t), vr(vVA0)))
    A("v_lshl_add_u32 %s, %s, 4, %s" % (vr(vVA0), vr(t + 3), vr(vVA0)))
    A("v_and_b32 %s, 1, v0" % vr(t + 4)); A("v_lshl_add_u32 %s, %s, 3, %s" % (vr(vVA0), vr(t + 4), vr(vVA0)))
    A("v_add_u32 %s, %d, %s" % (vr(vVA0), VRING, vr(vVA0)))
    A("v_xor_b32 %s, 32, %s" % (vr(vVA1), vr(vVA0)))
    A("v_lshlrev_b32 %s, 4, v0" % vr(vLin)); A("v_add_u32 %s, s47, %s" % (vr(vLin), vr(vLin)))
    A("v_mov_b32 %s, %s" % (vr(vQW), vr(vLin)))
    A("v_and_b32 %s, 15, v0" % vr(t + 3))
    A("v_mul_u32_u24 %s, 272, %s" % (vr(vEW), vr(t + 3))); A("v_lshl_add_u32 %s, %s, 3, %s" % (vr(vEW), vr(t + 1), vr(vEW))); A("v_add_u32 %s, s47, %s" % (vr(vEW), vr(vEW)))
    A("v_mul_u32_u24 %s, 272, %s" % (vr(vER), vr(t + 1))); A("v_lshl_add_u32 %s, %s, 4, %s" % (vr(vER), vr(t + 3), vr(vER))); A("v_add_u32 %s, s47, %s" % (vr(vER), vr(vER)))
    A("v_cmp_gt_u32 vcc, 2, %s" % vr(t + 2)); A("v_mov_b32 %s, 0x3f803f80" % vr(t + 3)); A("v_mov_b32 %s, 0" % vr(vBad))
    for i in range(4): A("v_cndmask_b32 %s, 0, %s, vcc" % (vr(vONE + i), vr(t + 3)))
    A("v_cmp_eq_u32 vcc, 1, %s" % vr(t + 2)); A("v_mov_b32 %s, 0x44444444" % vr(vIDX)); A("v_mov_b32 %s, 0xeeeeeeee" % vr(t + 3))
    A("v_cndmask_b32 %s, %s, %s, vcc" % (vr(vIDX), vr(vIDX), vr(t + 3)))
    for i in range(16): A("v_mov_b32 %s, 0" % vr(vL + i))
    if O.stamps:
        A("s_lshl_b32 s42, s2, 2"); A("s_add_u32 s42, s42, %s" % sr(sWave)); A("s_lshl_b32 s57, s42, 9"); A("s_mov_b32 s56, 0")
        A("s_mov_b32 s54, 0x1000000"); A("s_mov_b32 s55, 0x20000")
    return L, L2

def prologue():
    su, su2 = setup()
    st = {'Q': 0, 'K': 0, 'V': 0}
    G = O.pro.split(',')
    L = su + [Env(lambda e: e.update(tile=0, ka=0, va0=0, va1=0, sM=0, sT=0))]
    L += pro_group(G[0], st)
    if O.prefetch:
        L += [I("s_getpc_b64 s[42:43]"), I("s_mul_i32 s44, %s, 6144" % sr(sWave)), I("v_lshlrev_b32 v1, 7, v0"), I("v_add_u32 v1, s44, v1"),
              I("global_load_dword v1, v1, s[42:43]")]
    L += su2 + stamp(0)
    L += [Wait(vm=w_dma('K', 0)), I("s_barrier")] + stamp(1)
    L += [k_read(i, 0) for i in range(16)]
    cb = conv_block(vO, vLin, 0, pk=True)
    L += cb[:1] + pro_group(G[1], st) + cb[1:]
    L += [q_read(0, ks) for ks in range(4)] + stamp(5)
    qk = [mfma_qk(0, a >> 2, a & 3) for a in range(16)]
    L += [Wait(lg=w_regs(ar(aQ, 4)))] + qk[:1] + [Wait(lg=w_regs(ar(aQ, 16)))] + qk[1:12]
    for a in range(12, 16): L += [exp(a - 12), qk[a]]
    for e in range(4, 12): L += [exp(e)] + ([cvtp(e - 3, 1)] if not e & 1 else [])
    L += [cvtp(9, 1), cvtp(11, 1)]
    cb = conv_block(vO + 32, vLin, 4096, pk=True)
    L += cb[:1] + pro_group(G[2], st) + cb[1:]
    L += [q_read(1, ks) for ks in range(4)] + stamp(6)
    L += [Wait(vm=w_dma('V', 0)), I("s_barrier")]
    L += pro_group(G[3], st)
    L += vlo_reads(0, 0) + vhi_reads(0, 0)
    L += [Wait(lg=w_regs(ar(aQ + 16, 16)))] + stamp(8)
    return L, st, G[4:]

def tile0(st, G):
    T = base_tile(0, czero=True)
    T.put(15, [Wait(lg=w_regs(ar(aVH, 96)))])
    c2 = conv_block(vO + 64, vLin, 8192) + [q_read(2, ks) for ks in range(4)]
    T.spread(c2, 1, NM - 4, front=False)
    T.put(NM - 1, [Wait(lg=w_regs(ar(aQ + 32, 16)))])
    g4 = pro_group(G[0], st)
    assert st == {'Q': 4, 'K': 3, 'V': 3}, st
    c3 = conv_block(vO + 96, vLin, 12288) + [q_read(3, ks) for ks in range(4)]
    c3 = c3[:1] + g4 + [I("s_mov_b32 %s, %d" % (sr(sT), 3 * 16384)), Env(lambda e: e.update(sT=3))] + c3[1:]
    T.spread(c3, NM + 1, 2 * NM - 4, front=False)
    T.put(2 * NM - 1, [Wait(lg=w_regs(ar(aQ + 48, 16)))])
    T.spread([delta_ops()[:1], delta_ops()[1:], adv(vVA0, 'va0'), adv(vVA1, 'va1'), adv(vKA, 'ka')], 2 * NM + 1, 2 * NM + 9, pack=True, front=False)
    T.put(2 * NM + 9, barrier(w_dma('K', 1)))
    T.spread([k_read(i, 1) for i in range(16)], 2 * NM + 11, 3 * NM - 4, mingap=lambda i: 2 * NM + i)
    T.put(3 * NM - 1, [Wait(lg=w_regs(ar(aK, 64)))])
    T.put(3 * NM + 5, [Wait(vm=w_dma('V', 1)), I("s_barrier")])
    T.spread(vhi_reads(1, 1)[:8], 3 * NM + 25, 4 * NM, pack=True)
    T.spread(vlo_reads(1, 1), 3 * NM + 7, 3 * NM + 24)
    T.put(4 * NM - 1, [Wait(lg=w_regs(ar(aVL, 64)))])
    T.spread(dma_seq(), 3 * NM + 7, 4 * NM - 1, front=False)
    T.put(3 * NM + 1, [I("s_mov_b32 %s, %d" % (sr(sEnd), (4 + 4) * 16384))])
    INFO.append(("T0", T.cycles()))
    return finish_tile(T)

def tile15():
    T = base_tile(1)
    steady(T, 1)
    for q in range(4):
        lo = 12 if q == 0 else (q - 1) * NM + 22
        T.spread([q_read(q, ks) for ks in range(4)], lo, lo + 8, front=False)
    return T

def switch_tiles():
    T15 = tile15()
    T16 = base_tile(0, czero=True); steady(T16, 0)
    T = TL(T15.a + T16.a); T.g = T15.g + T16.g; T.isexp = T15.isexp + T16.isexp
    T.g[4 * NM - 1].append([inc('tile')])
    lo = NM + 3; hi = 4 * NM + 3 * NM + 12
    w = (hi - lo) / 4.0
    prevS = []
    for q in range(4):
        Lq, Sq = epilogue(q, zero=True)
        a = max(int(lo + q * w), (q + 1) * NM + 7); b = min(int(lo + (q + 1) * w), 4 * NM + q * NM + 12)
        k = 14
        T.spread(Lq[:k] + prevS + Lq[k:], a, b, front=False)
        prevS = Sq
    T.spread(prevS, hi + 6, hi + 14, front=False)
    T.put(hi + 15, [I("s_mov_b32 %s, 131072" % sr(sO1))])
    T.put(hi + 15, [I("s_mov_b32 %s, %d" % (sr(sEnd), (30 + 4) * 16384))])
    T.put(T.n - 1, [I("s_branch LOOPP")])
    INFO.append(("T15+16", T.cycles()))
    return finish_tile(T)

def tile31():
    T = base_tile(1, last=True)
    steady(T, 1, nxt=False)
    prevS = []
    for q in range(3):
        Lq, Sq = epilogue(q)
        a = (q + 1) * NM + 7; b = min((q + 2) * NM + 7, T.n)
        k = 14
        T.spread(Lq[:k] + prevS + Lq[k:], a, b, front=False)
        prevS = Sq
    INFO.append(("T31", T.cycles()))
    Lq, Sq = epilogue(3, pk=True)
    L = finish_tile(T) + Lq[:4] + prevS + Lq[4:]
    chk = [I("v_cmp_lt_u32 vcc, 0x20000000, %s" % vr(vBad))]
    return L + chk + Sq

def fallback():
    vM = vR
    pre = [I("FALLBACK:"), I("s_waitcnt vmcnt(0) lgkmcnt(0)"), I("s_lshl_b32 s46, %s, 12" % sr(sWave)), I("s_lshl_b32 s47, %s, 14" % sr(sWave))]
    pre += [I("v_subrev_u32 %s, s46, %s" % (vr(vDM + j), vr(vDM + j))) for j in range(4)]
    for r in (vVA0, vVA1):
        pre += [I("v_and_b32 %s, 0x3fff, %s" % (vr(r), vr(r))), I("v_add_u32 %s, s47, %s" % (vr(r), vr(r)))]
    pre += [I("s_mov_b32 %s, 0" % sr(sO1)), I("s_mov_b32 %s, 0" % sr(sEnd))]
    def stage(srd, soff):
        L = []
        for x in range(4):
            L += [I("s_add_u32 m0, s47, %d" % (x * 4096)), I("s_add_u32 s44, %s, %d" % (soff, x * 4096))]
            L += [I("buffer_load_dwordx4 %s, %s, s44 offen offset:%d lds" % (vr(vDM + j), sr(srd, 4), j * 1024)) for j in range(4)]
        return L + [I("s_waitcnt vmcnt(0)")]
    def kreads():
        L = []
        for i in range(16):
            L.append(k_read(i, 0, addr=vQA, chk=False))
            if i & 7 == 7: L.append(I("s_waitcnt lgkmcnt(0)"))
        return L
    blk = [I("FB_BLK:"), I("s_add_u32 s45, %s, s47" % sr(sO1))] + stage(S_Q, "s45")
    for q in range(4):
        blk += [q_read(q, ks) for ks in range(4)] + [I("s_waitcnt lgkmcnt(0)")]
    blk += [I("v_mov_b32 %s, 0xff800000" % vr(vM + q)) for q in range(4)]
    blk += [I("s_mov_b32 %s, %s" % (sr(sT), sr(sEnd))), I("s_add_u32 %s, %s, 262144" % (sr(sEnd), sr(sEnd)))]
    p1 = [I("FB_P1:")] + stage(S_K, sr(sT)) + kreads()
    for q in range(4):
        p1 += [mfma_qk(q, a >> 2, a & 3) for a in range(16)] + [I("s_nop 7")]
        p1 += [I("v_max3_f32 %s, %s, %s, %s" % (vr(vM + q), vr(vM + q), vr(vS + 2 * i), vr(vS + 2 * i + 1))) for i in range(8)]
        p1 += [I("s_nop 1")]
    p1 += [I("s_add_u32 %s, %s, 16384" % (sr(sT), sr(sT))), I("s_cmp_lt_u32 %s, %s" % (sr(sT), sr(sEnd))), I("s_cbranch_scc1 FB_P1")]
    mid = []
    for q in range(4):
        for op in ("v_permlane32_swap_b32", "v_permlane16_swap_b32"):
            mid += [I("v_mov_b32 %s, %s" % (vr(vT), vr(vM + q))), I("s_nop 1"), I("%s %s, %s" % (op, vr(vT), vr(vM + q))), I("s_nop 1"),
                    I("v_max_f32 %s, %s, %s" % (vr(vM + q), vr(vT), vr(vM + q)))]
    mid += [I("v_mov_b32 %s, 0" % vr(vO + i)) for i in range(128)] + [I("v_mov_b32 %s, 0" % vr(vL + i)) for i in range(16)]
    mid += [I("s_sub_u32 %s, %s, 262144" % (sr(sT), sr(sT)))]
    p2 = [I("FB_P2:")] + stage(S_K, sr(sT)) + kreads() + stage(S_V, sr(sT))
    n = 0
    for db in range(8):
        for h in range(2):
            for u in range(2):
                p2.append(v_read(db, h, u, 0, 0, chk=False)); n += 1
                if n % 8 == 0: p2.append(I("s_waitcnt lgkmcnt(0)"))
    for q in range(4):
        p2 += [mfma_qk(q, a >> 2, a & 3) for a in range(16)] + [I("s_nop 7")]
        for e in range(16):
            p2 += [I("v_sub_f32 %s, %s, %s" % (vr(vS + e), vr(vS + e), vr(vM + q))), I("v_mul_f32 %s, %s, %s" % (vr(vS + e), sr(sC), vr(vS + e))), exp(e)]
        p2 += [I("s_nop 0")] + [cvtp(e, 0) for e in range(1, 16, 2)] + [I("s_nop 1")]
        p2 += [mfma_pv(q, a >> 1, a & 1, 0, 0) for a in range(16)] + [mfma_l(q, 0)]
    p2 += [I("s_add_u32 %s, %s, 16384" % (sr(sT), sr(sT))), I("s_cmp_lt_u32 %s, %s" % (sr(sT), sr(sEnd))), I("s_cbranch_scc1 FB_P2")]
    fin = [I("s_nop 7")]
    for q in range(4):
        Lq, Sq = epilogue(q, check=False)
        fin += Lq + Sq
    fin += [I("s_mov_b32 %s, 131072" % sr(sO1)), I("s_cmp_lt_u32 %s, 524288" % sr(sEnd)), I("s_cbranch_scc1 FB_BLK"), I("s_endpgm")]
    return pre, blk, p1, mid, p2, fin

def resolve(trace):
    vmq = []; lgq = []; env = {}
    from asmlib import parse_wait
    for x in trace:
        if x.kind == 'env': x.fn(env); continue
        if x.kind == 'label': continue
        if x.kind == 'autowait':
            for q, pred, attr, mx in ((vmq, x.vm, 'nvm', 63), (lgq, x.lg, 'nlg', 15)):
                if pred is None: continue
                idx = [i for i, (p, tag) in enumerate(q) if pred(p, tag, env)]
                if not idx: continue
                n = min(len(q) - 1 - idx[-1], mx)
                if attr == 'nlg' and any(p.kind == 'smem' for p, _ in q): n = 0
                cur = getattr(x, attr)
                setattr(x, attr, n if cur is None else min(cur, n))
                del q[:len(q) - n]
            continue
        meta = x.meta(env) if callable(x.meta) else x.meta
        if x.kind in VMEMK: vmq.append((x, meta))
        elif x.kind in ('dsr', 'dsw', 'smem'): lgq.append((x, meta))
        elif x.kind == 'wait':
            vm, lg = parse_wait(x.text)
            if vm is not None and len(vmq) > vm: del vmq[:len(vmq) - vm]
            if lg is not None and len(lgq) > lg: del lgq[:len(lgq) - lg]
    for x in trace:
        if x.kind == 'autowait' and x.inst is None and (x.nvm is not None or x.nlg is not None):
            t = "s_waitcnt" + (" vmcnt(%d)" % x.nvm if x.nvm is not None else "") + (" lgkmcnt(%d)" % x.nlg if x.nlg is not None else "")
            x.inst = I(t)
def lower(L):
    out = []
    for x in L:
        if x.kind == 'autowait':
            if x.inst is not None: out.append(x.inst)
        else: out.append(x)
    return out

def build():
    pro, st, G = prologue()
    t0 = tile0(st, G)
    lp = [I("LOOPP:")] + tile_plain(1, name="P1") + tile_plain(0, endx=[I("s_cmp_lg_u32 %s, %s" % (sr(sT), sr(sEnd))), I("s_cbranch_scc1 LOOPP")], name="P0")
    d1 = [I("s_cmp_eq_u32 %s, %d" % (sr(sEnd), 8 * 16384)), I("s_cbranch_scc1 STUB")]
    d2 = [I("s_cmp_eq_u32 %s, %d" % (sr(sEnd), 34 * 16384)), I("s_cbranch_scc1 T31")]
    def after(j): return [q_load(vR, j, sr(sQ1))]
    cb = conv_block(vR, vQW, 0, after=after)
    half = len(cb) // 2
    qpre = [I("s_add_u32 %s, %s, 4096" % (sr(sQ1), sr(sQ1)))]
    qpost = [I("v_add_u32 %s, 4096, %s" % (vr(vQW), vr(vQW)))]
    lq = [I("LOOPQ:")] + tile_plain(1, extra=qpre + cb[:half], name="Q1") + \
        tile_plain(0, extra=cb[half:] + qpost, endx=[I("s_cmp_lg_u32 %s, %d" % (sr(sT), 18 * 16384)), I("s_cbranch_scc1 LOOPQ")], name="Q0")
    sw = stamp(9) + switch_tiles()
    t31 = [I("T31:")] + stamp(12) + tile31()
    fin = []
    if O.stamps:
        fin = stamp(13) + [I("s_waitcnt vmcnt(0)")] + stamp(2) + [I("s_memrealtime s[58:59]"), I("s_waitcnt lgkmcnt(0)"), I("v_writelane_b32 %s, s58, 7" % vr(vSt)),
              I("v_lshlrev_b32 v1, 2, v0"), I("buffer_store_dword %s, v1, s[52:55], s57 offen" % vr(vSt)), I("buffer_store_dword %s, v1, s[52:55], s57 offen offset:256" % vr(vSt + 1))]
    if O.dbg:
        fin = [I("s_waitcnt vmcnt(0)"), I("s_memrealtime s[62:63]"), I("s_memtime s[64:65]"), I("s_waitcnt lgkmcnt(0)"),
               I("s_sub_u32 s64, s64, s60"), I("s_sub_u32 s63, s62, s58"), I("s_not_b32 s58, s58"), I("s_not_b32 s65, s64"), I("s_not_b32 s66, s62"),
               I("v_mov_b32 v2, s62"), I("v_writelane_b32 v2, s58, 1"), I("v_writelane_b32 v2, s64, 2"), I("v_writelane_b32 v2, s63, 3"), I("v_writelane_b32 v2, s65, 4"), I("v_writelane_b32 v2, s66, 5"),
               I("v_mbcnt_lo_u32_b32 v1, -1, 0"), I("v_lshlrev_b32 v1, 2, v1"), I("s_mov_b64 exec, 63"), I("buffer_atomic_umax v2, v1, s[52:55], 0 offen"), I("s_mov_b64 exec, -1")]
    if not (O.drop or O.nofb): fin += [I("s_cbranch_vccnz FALLBACK")]
    end = [I("END:"), I("s_endpgm")]
    stub = [I("STUB:"), I("s_add_u32 %s, %s, %d" % (sr(sQ1), sr(sQ1), 131072 - 16384))] + [q_load(vR, j, sr(sQ1)) for j in range(4)] + \
        [I("s_mov_b32 %s, %d" % (sr(sEnd), 10 * 16384)), I("s_branch LOOPP")]
    fb = fallback()
    static = pro + t0 + lp + d1 + d2 + lq + sw + t31 + fin + end + stub
    for x in fb: static += x
    T = pro + t0 + lp * 2 + d1 + stub + lp + d1 + d2 + lq * 4 + sw + lp * 7 + d1 + d2 + t31 + fin
    pre, blk, p1, mid, p2, ffin = fb
    T += pre + (blk + p1 * 2 + mid + p2 * 2 + ffin) * 2
    resolve(T)
    env = {}
    errs = check_trace(lower(T), env) + check_scc(lower(T))
    assert env['tile'] == 32 and env['sT'] == 34, env
    return lower(static), errs

HEADER = open('standalone__gqa_softmax__near_ridge.s.ref').read().split('; Override')[0]

def emit(static):
    out = [HEADER.rstrip('\n')]
    out.append("; @launch grid=(256,1,1) block=(256,1,1) lds=163840")
    out.append('.amdgcn_target "amdgcn-amd-amdhsa--gfx950"\n.text\n.globl %s\n.p2align 8\n.type %s,@function\n%s:' % (NAME, NAME, NAME))
    for x in static:
        if x.kind == 'env': continue
        out.append(x.text if x.kind == 'label' else "    " + x.text)
    out.append('.section .rodata,"a"\n.p2align 6\n.amdhsa_kernel %s\n  .amdhsa_next_free_vgpr 512\n  .amdhsa_next_free_sgpr 102\n  .amdhsa_accum_offset 256\n  .amdhsa_group_segment_fixed_size 0\n  .amdhsa_kernarg_size 48\n  .amdhsa_user_sgpr_count 2\n  .amdhsa_user_sgpr_kernarg_segment_ptr 1\n  .amdhsa_system_sgpr_workgroup_id_x 1\n.end_amdhsa_kernel' % NAME)
    return "\n".join(out) + "\n"

if __name__ == "__main__":
    outp = sys.argv[1]
    for a in sys.argv[2:]:
        k, v = a.split('=')
        cur = getattr(O, k)
        setattr(O, k, (v not in ('0', 'False')) if isinstance(cur, bool) else type(cur)(v))
    static, errs = build()
    seen = set()
    for e in errs:
        if e not in seen:
            seen.add(e)
            if not O.drop: print(e)
    print("errors:", len(errs), "unique", len(seen), INFO)
    open(outp, 'w').write(emit(static))
    import subprocess
    r = subprocess.run(["clang", "-x", "assembler", "-target", "amdgcn-amd-amdhsa", "-mcpu=gfx950", "-c", outp, "-o", "gen_test.o"], capture_output=True, text=True)
    print(r.stderr[:3000] if r.returncode else "assembled ok")
    r = subprocess.run("llvm-size gen_test.o", shell=True, capture_output=True, text=True); print(r.stdout)
```
